```python
import torch

def _softmax(x, axis=-1):
    return torch.softmax(x, dim=axis)
def _gelu(x):
    return torch.nn.functional.gelu(x, approximate="tanh")
def _silu(x):
    return torch.nn.functional.silu(x)
def _sigmoid(x):
    return torch.sigmoid(x)
def _layernorm(x, axis=-1, eps=1e-5):
    m = x.mean(dim=axis, keepdim=True)
    v = x.var(dim=axis, keepdim=True, unbiased=False)
    return (x - m) / torch.sqrt(v + eps)
def _scatter_add(tgt, idx, src, axis=0):
    return tgt.clone().index_add_(axis, idx, src)
def _segment_sum(src, seg, n):
    out = torch.zeros((n,) + src.shape[1:], dtype=src.dtype)
    return out.index_add_(0, seg, src)
def _pad(x, pw):
    flat = tuple(v for pair in reversed(pw) for v in pair)
    return torch.nn.functional.pad(x, flat)

kernel_name = 'standalone__gqa_block_cached__near_ridge'

def setup_inputs():

    _w = (lambda a: (lambda t: t.to(torch.bfloat16) if t.is_floating_point() else t)(torch.as_tensor(a)))
    B, Sq, D = 8, 64, 512
    Hq, Hkv, Sk, Dh = 32, 8, 512, 128
    assert Hq % Hkv == 0, (Hq, Hkv)
    return {
        "x": _w((lambda *s: torch.randn(*s, dtype=torch.bfloat16) * 0.8)(B, Sq, D)),
        "k_cache": _w((lambda *s: torch.randn(*s, dtype=torch.bfloat16) * 0.8)(B, Hkv, Sk, Dh)),
        "v_cache": _w((lambda *s: torch.randn(*s, dtype=torch.bfloat16) * 0.05)(B, Hkv, Sk, Dh)),
        "wq": _w((lambda *s: torch.randn(*s, dtype=torch.bfloat16) * 0.8)(D, Hq * Dh) * (D ** -0.5)),
        "wo": _w((lambda *s: torch.randn(*s, dtype=torch.bfloat16) * 0.05)(Hq * Dh, D) * ((Hq * Dh) ** -0.5)),
    }

def reference(x, k_cache, v_cache, wq, wo):
    B, Sq, D = x.shape
    Hq, Dh = 32, 128
    Hkv = k_cache.shape[1]
    rep = Hq // Hkv
    q = (lambda x, *d: x.permute(*d))((x @ wq).reshape(B, Sq, Hq, Dh), 0, 2, 1, 3)
    k = (lambda x, n, axis: torch.repeat_interleave(x, n, dim=axis))(k_cache, rep, axis=1)
    v = (lambda x, n, axis: torch.repeat_interleave(x, n, dim=axis))(v_cache, rep, axis=1)
    scores = torch.einsum("bhqd,bhkd->bhqk", q, k) * (Dh ** -0.5)
    p = _softmax(scores, axis=-1)
    o = torch.einsum("bhqk,bhkd->bhqd", p, v)
    return (lambda x, *d: x.permute(*d))(o, 0, 2, 1, 3).reshape(B, Sq, Hq * Dh) @ wo
```

```python
import re

REG_RE = re.compile(r"\b([vas])\[(\d+):(\d+)\]|\b([vas])(\d+)\b|\b(vcc|exec|m0|scc)\b")

TRANS = ("v_exp_f32", "v_log_f32", "v_rcp_f32", "v_rsq_f32", "v_sqrt_f32", "v_sin_f32", "v_cos_f32")


def regs_of(op):
    out = []
    for m in REG_RE.finditer(op):
        if m.group(1):
            out += [f"{m.group(1)}{i}" for i in range(int(m.group(2)), int(m.group(3)) + 1)]
        elif m.group(4):
            out.append(f"{m.group(4)}{m.group(5)}")
        else:
            out.append(m.group(6))
    return out


class Asm:
    def __init__(self):
        self.lines = []
        self.slot = 0
        self.w = {}
        self.srcc = {}
        self.stdata = {}
        self.mfma_d = {}
        self.vq = []
        self.lq = []
        self.nops = 0

    def raw(self, text):
        self.lines.append(text)

    def comment(self, text):
        self.lines.append("    ; " + text)

    def label(self, name):
        self.lines.append(name + ":")

    def nop(self, n):
        while n > 0:
            k = min(n, 16)
            self.lines.append(f"    s_nop {k-1}")
            self.slot += k
            self.nops += k
            n -= k

    @staticmethod
    def classify(mn, text):
        if mn.startswith("v_mfma"):
            return "mfma"
        if mn in TRANS:
            return "trans"
        if mn.startswith("v_"):
            return "valu"
        if mn.startswith("ds_read") or mn.startswith("ds_bpermute") or mn.startswith("ds_swizzle"):
            return "dsr"
        if mn.startswith("ds_write"):
            return "dsw"
        if mn.startswith("buffer_load") or mn.startswith("global_load"):
            return "dma" if re.search(r"\blds\b", text) else "vld"
        if mn.startswith("buffer_store") or mn.startswith("global_store") or mn.startswith("buffer_atomic"):
            return "vst"
        if mn.startswith("s_"):
            return "salu"
        return "other"

    def __call__(self, text):
        text = text.strip()
        mn = text.split()[0]
        rest = text[len(mn):]
        ops = [o.strip() for o in rest.split(",")] if rest.strip() else []
        kind = self.classify(mn, text)
        dst, src = [], []
        srcc = []
        if kind == "mfma":
            dst = regs_of(ops[0])
            src = regs_of(ops[1]) + regs_of(ops[2])
            srcc = regs_of(ops[3])
        elif kind in ("valu", "trans"):
            if mn.startswith("v_cmp"):
                dst = regs_of(ops[0]); src = sum((regs_of(o) for o in ops[1:]), [])
            elif mn.startswith("v_permlane") and "swap" in mn:
                dst = regs_of(ops[0]) + regs_of(ops[1]); src = list(dst)
            elif mn in ("v_add_co_u32", "v_addc_co_u32", "v_sub_co_u32"):
                dst = regs_of(ops[0]) + regs_of(ops[1]); src = sum((regs_of(o) for o in ops[2:]), [])
            else:
                dst = regs_of(ops[0]); src = sum((regs_of(o) for o in ops[1:]), [])
                if mn.startswith("v_fmac") or mn.startswith("v_pk_fmac"):
                    src += dst
                if mn.startswith("v_cndmask") and len(ops) == 3:
                    src.append("vcc")
        elif kind == "dsr" or kind == "vld":
            dst = regs_of(ops[0]); src = sum((regs_of(o) for o in ops[1:]), [])
        elif kind in ("dsw", "vst"):
            src = sum((regs_of(o) for o in ops), [])
        elif kind == "dma":
            src = sum((regs_of(o) for o in ops), []) + ["m0"]
        elif kind == "salu":
            if mn in ("s_waitcnt", "s_barrier", "s_nop", "s_endpgm", "s_setprio") or mn.startswith("s_cbranch") or mn == "s_branch":
                pass
            elif mn.startswith("s_cmp"):
                src = sum((regs_of(o) for o in ops), [])
            else:
                dst = regs_of(ops[0]); src = sum((regs_of(o) for o in ops[1:]), [])
        need = 0

        def req(prod_slot, n):
            nonlocal need
            have = self.slot - prod_slot - 1
            need = max(need, n - have)

        isvalu = kind in ("valu", "trans")
        for r in src + srcc:
            if r not in self.w:
                continue
            ps, pk = self.w[r]
            isv = r[0] in "va" and r not in ("vcc",)
            if pk in ("valu", "trans") and isv:
                if kind == "mfma":
                    req(ps, 2)
                if mn in ("v_readfirstlane_b32", "v_readlane_b32"):
                    req(ps, 1)
                if mn.startswith("v_permlane"):
                    req(ps, 2)
                if pk == "trans" and isvalu:
                    req(ps, 1)
            if pk in ("valu", "trans") and not isv:
                if kind in ("vld", "vst", "dma"):
                    req(ps, 5)
                if isvalu:
                    req(ps, 2)
                if kind == "salu":
                    req(ps, 1)
            if pk == "mfma":
                if kind == "mfma":
                    if r in srcc:
                        same = self.mfma_d.get(r) == (srcc[0], len(srcc))
                        req(ps, 0 if same else 10)
                    if r in src:
                        req(ps, 12)
                else:
                    req(ps, 12)
            if pk == "salu" and r == "m0" and kind == "dma":
                req(ps, 1)
        for r in dst:
            if r in self.w:
                ps, pk = self.w[r]
                if pk == "mfma" and kind != "mfma":
                    req(ps, 12)
                if pk == "mfma" and kind == "mfma":
                    same = self.mfma_d.get(r) == (dst[0], len(dst)) and r in srcc
                    if not same:
                        req(ps, 12)
            if isvalu and r in self.srcc:
                req(self.srcc[r], 7)
            if r in self.stdata:
                req(self.stdata[r], 2)
        if need > 0:
            self.nop(need)
        self.lines.append("    " + text)
        for r in dst:
            self.w[r] = (self.slot, kind)
            if kind == "mfma":
                self.mfma_d[r] = (dst[0], len(dst))
        for r in srcc:
            self.srcc[r] = self.slot
        if kind in ("vst", "dsw"):
            if "x4" in mn or "x3" in mn or "b128" in mn or "b96" in mn:
                data = regs_of(ops[0]) if kind == "vst" else regs_of(ops[1])
                for r in data:
                    self.stdata[r] = self.slot
        if mn == "s_nop":
            self.slot += int(ops[0]) + 1
        else:
            self.slot += 1

    def vm(self, text, tag=None):
        self(text)
        self.vq.append(tag)

    def lds(self, text, tag=None):
        self(text)
        self.lq.append(tag)

    def _count_after(self, q, tags):
        if not isinstance(tags, (list, tuple, set)):
            tags = [tags]
        last = -1
        for i, t in enumerate(q):
            if t in tags:
                last = i
        return len(q) - 1 - last if last >= 0 else None

    def wait(self, vm=None, lds=None):
        parts = []
        if vm is not None:
            n = 0 if vm == "all" else self._count_after(self.vq, vm)
            if n is not None:
                assert n <= 63, n
                parts.append(f"vmcnt({n})")
                self.vq = self.vq[len(self.vq) - n:] if n else []
        if lds is not None:
            n = 0 if lds == "all" else self._count_after(self.lq, lds)
            if n is not None:
                assert n <= 15, n
                parts.append(f"lgkmcnt({n})")
                self.lq = self.lq[len(self.lq) - n:] if n else []
        if parts:
            self("s_waitcnt " + " ".join(parts))

    def text(self):
        return "\n".join(self.lines) + "\n"
```

```python
import sys, math, struct
from asmlib import Asm

OUT = sys.argv[1] if len(sys.argv) > 1 else "standalone__gqa_block_cached__near_ridge.s"

WOF_BASE = 4 << 20
WS_BYTES = 8 << 20

def f32bits(x):
    return struct.unpack("<I", struct.pack("<f", x))[0]

SCALE_LOG2E = (128 ** -0.5) * math.log2(math.e)

QS = [i * 24576 for i in range(4)]
KV_EARLY = 98304
KV_LATE = 0
QX = 65536
MX = 81920
LX = 82944


def slot_base(kb):
    return (KV_EARLY + kb * 8192) if kb < 2 else (KV_LATE + (kb - 2) * 8192)


def srd(a, d, lo, hi, nbytes):
    a(f"s_mov_b32 s{d}, s{lo}")
    a(f"s_mov_b32 s{d+1}, s{hi}")
    if isinstance(nbytes, int):
        a(f"s_mov_b32 s{d+2}, {nbytes}")
    else:
        a(f"s_mov_b32 s{d+2}, s{nbytes[1:]}")
    a(f"s_mov_b32 s{d+3}, 0x00020000")


def gen_k1(a):
    a.raw(".globl attn_kernel\n.p2align 8\n.type attn_kernel,@function")
    a.label("attn_kernel")
    a("s_cmp_ge_u32 s2, 256")
    a("s_cbranch_scc1 L1_done")
    a("s_load_dwordx16 s[4:19], s[0:1], 0")
    a("s_and_b32 s44, s2, 7")
    a("s_lshr_b32 s45, s2, 3")
    a("s_lshr_b32 s46, s45, 2")
    a("s_and_b32 s47, s45, 3")
    a("s_lshl_b32 s48, s44, 2")
    a("s_add_u32 s48, s48, s47")
    a("v_lshrrev_b32 v1, 6, v0")
    a("v_and_b32 v2, 63, v0")
    a("v_readfirstlane_b32 s49, v1")
    a("v_lshrrev_b32 v3, 4, v2")
    a("v_and_b32 v4, 15, v2")
    a("v_lshlrev_b32 v5, 2, v3")
    a("v_xor_b32 v5, v4, v5")
    a("v_lshlrev_b32 v5, 4, v5")
    a("v_lshl_add_u32 v8, v3, 13, v5")
    a("v_lshl_add_u32 v9, v3, 8, v5")
    a("v_lshl_add_u32 v16, v3, 10, v5")
    a("v_lshl_add_u32 v16, v1, 8, v16")
    for i in range(4):
        a(f"v_add_u32 v6, {4*i}, v3")
        a("v_xor_b32 v6, v4, v6")
        a("v_lshlrev_b32 v6, 4, v6")
        a(f"v_lshl_add_u32 v{10+i}, v3, 8, v6")
    a("v_lshrrev_b32 v6, 3, v2")
    a("v_and_b32 v7, 7, v2")
    for e in range(2):
        a(f"v_add_u32 v36, {4*e}, v3")
        a("v_and_b32 v36, 7, v36")
        a("v_xor_b32 v36, v7, v36")
        a("v_lshlrev_b32 v36, 4, v36")
        a(f"v_lshl_add_u32 v{14+e}, v6, 10, v36")
    a("v_lshrrev_b32 v36, 5, v2")
    a("v_and_b32 v37, 31, v2")
    a("v_and_b32 v38, 1, v3")
    a("v_lshrrev_b32 v39, 2, v2")
    a("v_and_b32 v39, 3, v39")
    a("v_and_b32 v40, 3, v2")
    a("v_lshrrev_b32 v41, 1, v40")
    a("v_and_b32 v42, 1, v40")
    a("v_lshlrev_b32 v43, 2, v39")
    a("v_lshl_add_u32 v43, v38, 1, v43")
    a("v_lshl_add_u32 v48, v36, 3, v39")
    a("v_lshlrev_b32 v48, 8, v48")
    a("v_add_u32 v49, v43, v41")
    a("v_lshl_add_u32 v48, v49, 4, v48")
    a("v_lshl_add_u32 v48, v42, 3, v48")
    a("v_lshlrev_b32 v49, 6, v1")
    a("v_xor_b32 v17, v48, v49")
    a("v_mov_b32 v47, v48")
    a("v_lshl_add_u32 v48, v36, 2, v39")
    a("v_lshlrev_b32 v48, 8, v48")
    a("v_add_u32 v49, v43, v42")
    a("v_lshl_add_u32 v48, v49, 4, v48")
    a("v_lshl_add_u32 v48, v41, 3, v48")
    a("v_lshl_add_u32 v48, v1, 14, v48")
    for dt in range(4):
        a(f"v_xor_b32 v{30+dt}, {dt<<6}, v48")
    a("v_lshrrev_b32 v48, 1, v37")
    a("v_and_b32 v48, 7, v48")
    a("v_xor_b32 v48, v36, v48")
    a("v_lshlrev_b32 v48, 4, v48")
    a("v_lshl_add_u32 v48, v37, 7, v48")
    for kc in range(4):
        a(f"v_xor_b32 v{18+kc}, {kc<<5}, v48")
    a("v_and_b32 v48, 15, v37")
    a("v_xor_b32 v48, v36, v48")
    a("v_lshlrev_b32 v48, 4, v48")
    a("v_lshl_add_u32 v48, v37, 8, v48")
    for c in range(8):
        a(f"v_xor_b32 v{22+c}, {c<<5}, v48")
    a("v_and_b32 v48, 15, v37")
    a("v_lshlrev_b32 v49, 2, v1")
    a("v_xor_b32 v48, v48, v49")
    a("v_lshlrev_b32 v48, 4, v48")
    a("v_lshl_add_u32 v48, v37, 8, v48")
    a("v_lshl_add_u32 v34, v36, 3, v48")
    a("v_lshlrev_b32 v35, 4, v2")
    a("v_mov_b32 v46, v37")
    a("s_waitcnt lgkmcnt(0)")
    a("s_lshl_b32 s50, s46, 16")
    a("s_add_u32 s4, s4, s50"); a("s_addc_u32 s5, s5, 0")
    srd(a, 20, 4, 5, 65536)
    a("s_lshl_b32 s50, s46, 20"); a("s_lshl_b32 s51, s44, 17"); a("s_add_u32 s50, s50, s51")
    a("s_add_u32 s6, s6, s50"); a("s_addc_u32 s7, s7, 0")
    srd(a, 24, 6, 7, 131072)
    a("s_add_u32 s8, s8, s50"); a("s_addc_u32 s9, s9, 0")
    srd(a, 28, 8, 9, 131072)
    a("s_lshl_b32 s50, s48, 8")
    a("s_add_u32 s10, s10, s50"); a("s_addc_u32 s11, s11, 0")
    a(f"s_sub_u32 s51, {512*4096*2}, s50")
    srd(a, 32, 10, 11, "s51")
    a("s_lshl_b32 s50, s2, 14")
    a("s_add_u32 s12, s12, s50"); a("s_addc_u32 s13, s13, 0")
    srd(a, 36, 12, 13, 16384)
    srd(a, 40, 18, 19, WS_BYTES)
    a("s_lshl_b32 s52, s49, 10")
    a("s_lshl_b32 s53, s49, 15")
    a("s_lshl_b32 s54, s49, 11")
    a("s_lshl_b32 s55, s49, 14")
    a("s_lshl_b32 s56, s49, 12")
    a(f"s_mov_b32 s57, {f32bits(SCALE_LOG2E)}")

    rot = [0]

    def dma(srd_, voff, lds_s, lds_imm, so_s, so_imm, tag, inst=0):
        sreg = 60 + rot[0] % 8
        rot[0] += 1
        a(f"s_add_u32 m0, s{lds_s}, {lds_imm}")
        if so_s is None:
            a(f"s_mov_b32 s{sreg}, {so_imm}")
        else:
            a(f"s_add_u32 s{sreg}, s{so_s}, {so_imm}")
        off = f" offset:{inst}" if inst else ""
        a.vm(f"buffer_load_dwordx4 v{voff}, s[{srd_}:{srd_+3}], s{sreg} offen{off} lds", tag)

    def issue_q(s):
        buf = QS[s % 4]
        for j in range(4):
            dma(32, 8, 52, buf + j * 4096, 53, s * 524288 + j * 131072, f"Q{s}")
        for e in range(2):
            dma(20, 14 + e, 54, buf + 16384 + e * 1024, 55, e * 8192 + s * 128, f"Q{s}")

    def issue_kv(which, kb):
        srd_ = 24 if which == "K" else 28
        for half in range(2):
            sreg = 60 + rot[0] % 8
            rot[0] += 1
            a(f"s_add_u32 m0, s55, {slot_base(kb) + half * 4096}")
            a(f"s_add_u32 s{sreg}, s53, {kb * 8192 + half * 4096}")
            for i in range(4):
                voff = (10 + i) if which == "K" else 9
                off = f" offset:{i*1024}" if i else ""
                a.vm(f"buffer_load_dwordx4 v{voff}, s[{srd_}:{srd_+3}], s{sreg} offen{off} lds", f"{which}{kb}")

    for s in range(4):
        issue_q(s)
    issue_kv("K", 0)
    issue_kv("K", 1)

    QACC = 192
    for s in range(8):
        a.comment(f"---- Q stage {s}")
        a.wait(vm=f"Q{s}")
        a("s_barrier")
        if 1 <= s <= 4:
            issue_q(s + 3)
        if s == 7:
            issue_kv("K", 2)
            issue_kv("K", 3)
        buf = QS[s % 4]
        a(f"v_add_u32 v36, {buf}, v17")
        for kc in range(4):
            a(f"v_add_u32 v{37+kc}, {buf + 16384}, v{18+kc}")

        def reads(kc):
            a.lds(f"ds_read_b64_tr_b16 v[{64+4*kc}:{65+4*kc}], v36 offset:{kc*4096}", f"f{kc}")
            a.lds(f"ds_read_b64_tr_b16 v[{66+4*kc}:{67+4*kc}], v36 offset:{kc*4096+1024}", f"f{kc}")
            for t in range(2):
                r = 80 + 8 * kc + 4 * t
                a.lds(f"ds_read_b128 v[{r}:{r+3}], v{37+kc} offset:{t*4096}", f"f{kc}")
        for kc in range(3):
            reads(kc)
        for kc in range(4):
            a.wait(lds=f"f{kc}")
            if kc == 0:
                reads(3)
            for t in range(2):
                r = 80 + 8 * kc + 4 * t
                acc = f"a[{QACC+16*t}:{QACC+16*t+15}]"
                c_ = "0" if (s == 0 and kc == 0) else acc
                a(f"v_mfma_f32_32x32x16_bf16 {acc}, v[{64+4*kc}:{67+4*kc}], v[{r}:{r+3}], {c_}")
    a("s_barrier")
    for t in range(2):
        for g in range(4):
            b0 = 64 + (t * 4 + g) * 8
            for i in range(4):
                a(f"v_accvgpr_read_b32 v{b0+i}, a{QACC+16*t+4*g+i}")
            a(f"v_cvt_pk_bf16_f32 v{b0+4}, v{b0}, v{b0+1}")
            a(f"v_cvt_pk_bf16_f32 v{b0+5}, v{b0+2}, v{b0+3}")
            a(f"v_xor_b32 v{b0+6}, {g<<4}, v34")
            a(f"v_add_u32 v{b0+6}, {QX}, v{b0+6}")
            a.lds(f"ds_write_b64 v{b0+6}, v[{b0+4}:{b0+5}] offset:{t*8192}", "qw")
    a.wait(lds="all")
    a("s_barrier")
    QB = 128
    for c in range(8):
        a(f"v_add_u32 v{36+c}, {QX}, v{22+c}")
    for t in range(2):
        for c in range(8):
            r = QB + (t * 8 + c) * 4
            a.lds(f"ds_read_b128 a[{r}:{r+3}], v{36+c} offset:{t*8192}", "qr")
        a.wait(lds="all")

    a("v_mov_b32 v44, s55")
    def kreads(kb):
        a.wait(vm=f"K{kb}")
        fb = 64 + 32 * (kb % 2)
        a(f"v_add_u32 v45, {slot_base(kb)}, v44")
        for c in range(8):
            a(f"v_add_u32 v{36+c}, v45, v{22+c}")
        for c in range(8):
            a.lds(f"ds_read_b128 v[{fb+4*c}:{fb+4*c+3}], v{36+c}", f"k{kb}")
    kreads(0)
    for kb in range(4):
        a.wait(lds=f"k{kb}")
        issue_kv("V", kb)
        if kb < 3:
            kreads(kb + 1)
        fb = 64 + 32 * (kb % 2)
        for c in range(8):
            for t in range(2):
                sacc = f"v[{128+(kb*2+t)*16}:{128+(kb*2+t)*16+15}]"
                r = QB + (t * 8 + c) * 4
                c_ = "0" if c == 0 else sacc
                a(f"v_mfma_f32_32x32x16_bf16 {sacc}, v[{fb+4*c}:{fb+4*c+3}], a[{r}:{r+3}], {c_}")

    def S(kb, t, r):
        return 128 + (kb * 2 + t) * 16 + r
    lists = [[S(kb, t, r) for kb in range(4) for r in range(16)] for t in range(2)]
    for t in range(2):
        for ch in range(2):
            L = lists[t][32 * ch:32 * ch + 32]
            a(f"v_max3_f32 v{48+2*t+ch}, v{L[0]}, v{L[1]}, v{L[2]}")
    for i in range(3, 31, 2):
        for t in range(2):
            for ch in range(2):
                L = lists[t][32 * ch:32 * ch + 32]
                a(f"v_max3_f32 v{48+2*t+ch}, v{48+2*t+ch}, v{L[i]}, v{L[i+1]}")
    for t in range(2):
        L0 = lists[t][31]; L1 = lists[t][63]
        a(f"v_max3_f32 v{48+2*t}, v{48+2*t}, v{L0}, v{L1}")
        a(f"v_max_f32 v{48+2*t}, v{48+2*t}, v{49+2*t}")
    for t in range(2):
        a(f"v_mov_b32 v{49+2*t}, v{48+2*t}")
    for t in range(2):
        a(f"v_permlane32_swap_b32 v{48+2*t}, v{49+2*t}")
    for t in range(2):
        a(f"v_max_f32 v{48+2*t}, v{48+2*t}, v{49+2*t}")
    a("v_lshlrev_b32 v36, 4, v46")
    a(f"v_add_u32 v36, {MX}, v36")
    a("v_lshl_add_u32 v37, v1, 2, v36")
    for t in range(2):
        a.lds(f"ds_write_b32 v37, v{48+2*t} offset:{t*512}", "mw")
    a.wait(lds="all")
    a("s_barrier")
    for t in range(2):
        a.lds(f"ds_read_b128 v[{52+4*t}:{55+4*t}], v36 offset:{t*512}", "mr")
    for i in range(4):
        dma(36, 16, 56, QX + i * 1024, None, i * 4096, "WO")
    a.wait(lds="all")
    for t in range(2):
        a(f"v_max3_f32 v{48+t}, v{52+4*t}, v{53+4*t}, v{54+4*t}")
        a(f"v_max_f32 v{48+t}, v{48+t}, v{55+4*t}")
        a(f"v_mul_f32 v{48+t}, s57, v{48+t}")
    for t in range(2):
        a(f"v_mov_b32 v{50+2*t}, 0")
        a(f"v_mov_b32 v{51+2*t}, 0")
    for kb in range(4):
        for t in range(2):
            for r in range(16):
                a(f"v_fma_f32 v{S(kb,t,r)}, v{S(kb,t,r)}, s57, -v{48+t}")
            for r in range(16):
                a(f"v_exp_f32 v{S(kb,t,r)}, v{S(kb,t,r)}")
            for r in range(16):
                a(f"v_add_f32 v{50+2*t+(r&1)}, v{50+2*t+(r&1)}, v{S(kb,t,r)}")
            for i in range(8):
                a(f"v_cvt_pk_bf16_f32 v{S(kb,t,i)}, v{S(kb,t,2*i)}, v{S(kb,t,2*i+1)}")
    for t in range(2):
        a(f"v_add_f32 v{50+2*t}, v{50+2*t}, v{51+2*t}")
        a(f"v_mov_b32 v{51+2*t}, v{50+2*t}")
    for t in range(2):
        a(f"v_permlane32_swap_b32 v{50+2*t}, v{51+2*t}")
    for t in range(2):
        a(f"v_add_f32 v{50+2*t}, v{50+2*t}, v{51+2*t}")
    for t in range(2):
        a.lds(f"ds_write_b32 v37, v{50+2*t} offset:{LX-MX+t*512}", "lw")

    steps = [(kb, u) for kb in range(4) for u in range(2)]
    def vreads(i):
        kb, u = steps[i]
        if u == 0:
            a.wait(vm=f"V{kb}")
            for dt in range(4):
                a(f"v_add_u32 v{40+dt}, {slot_base(kb)}, v{30+dt}")
        fb = 64 + 16 * (i % 2)
        for dt in range(4):
            a.lds(f"ds_read_b64_tr_b16 v[{fb+4*dt}:{fb+4*dt+1}], v{40+dt} offset:{u*4096}", f"v{i}")
            a.lds(f"ds_read_b64_tr_b16 v[{fb+4*dt+2}:{fb+4*dt+3}], v{40+dt} offset:{u*4096+2048}", f"v{i}")
    vreads(0)
    for i, (kb, u) in enumerate(steps):
        a.wait(lds=f"v{i}")
        if i + 1 < len(steps):
            vreads(i + 1)
        fb = 64 + 16 * (i % 2)
        for dt in range(4):
            for t in range(2):
                oacc = f"a[{(dt*2+t)*16}:{(dt*2+t)*16+15}]"
                p = S(kb, t, 4 * u)
                c_ = "0" if i == 0 else oacc
                a(f"v_mfma_f32_32x32x16_bf16 {oacc}, v[{fb+4*dt}:{fb+4*dt+3}], v[{p}:{p+3}], {c_}")

    a.wait(vm="WO")
    a("v_add_u32 v36, s56, v47")
    a(f"v_add_u32 v36, {QX}, v36")
    for i in range(4):
        a(f"v_xor_b32 v{37+i}, {i<<6}, v36")
    for i in range(4):
        a.lds(f"ds_read_b64_tr_b16 v[{96+4*i}:{97+4*i}], v{37+i}", "wo")
        a.lds(f"ds_read_b64_tr_b16 v[{98+4*i}:{99+4*i}], v{37+i} offset:1024", "wo")
    a("s_lshl_b32 s58, s49, 20")
    a("s_lshl_b32 s59, s2, 10")
    a("s_add_u32 s58, s58, s59")
    a.wait(lds="all")
    for i in range(4):
        a(f"s_add_u32 s{68+i}, s58, {WOF_BASE + i * 262144}")
        a.vm(f"buffer_store_dwordx4 v[{96+4*i}:{99+4*i}], v35, s[40:43], s{68+i} offen", "st")

    a("v_add_u32 v36, s55, v35")
    a(f"v_add_u32 v37, {KV_EARLY}, v36")
    for dt in range(4):
        for t in range(2):
            for g in range(4):
                r = (dt * 2 + t) * 16 + 4 * g
                base = 36 if dt < 2 else 37
                a.lds(f"ds_write_b128 v{base}, a[{r}:{r+3}] offset:{(dt&1)*8192 + t*4096 + g*1024}", "cw")
    a.wait(lds="all")
    a("s_barrier")
    a("s_and_b32 s58, s49, 1"); a("s_lshl_b32 s58, s58, 13")
    a("s_lshr_b32 s59, s49, 1"); a(f"s_mul_i32 s59, s59, {KV_EARLY}")
    a("s_add_u32 s58, s58, s59")
    a("v_add_u32 v36, s58, v35")
    a("v_lshlrev_b32 v37, 4, v46")
    a(f"v_add_u32 v37, {LX}, v37")
    for t in range(2):
        a.lds(f"ds_read_b128 v[{48+4*t}:{51+4*t}], v37 offset:{t*512}", "lr")
    a("s_lshl_b32 s58, s46, 19"); a("s_lshl_b32 s59, s48, 13"); a("s_add_u32 s58, s58, s59")
    a("s_add_u32 s58, s58, s54")
    a(f"s_add_u32 s59, s58, 262144")
    a.wait(lds="lr")
    for tt in range(2):
        a(f"v_add_f32 v{48+4*tt}, v{48+4*tt}, v{49+4*tt}")
        a(f"v_add_f32 v{50+4*tt}, v{50+4*tt}, v{51+4*tt}")
        a(f"v_add_f32 v{48+4*tt}, v{48+4*tt}, v{50+4*tt}")
        a(f"v_rcp_f32 v{48+4*tt}, v{48+4*tt}")
    for t in range(2):
        for ws_ in range(4):
            for g in range(4):
                r = 128 + ws_ * 16 + 4 * g
                a.lds(f"ds_read_b128 v[{r}:{r+3}], v36 offset:{ws_*16384 + t*4096 + g*1024}", f"cr{ws_//2}")
        a.wait(lds="all")
        for r in range(16):
            a(f"v_add_f32 v{128+r}, v{128+r}, v{144+r}")
            a(f"v_add_f32 v{160+r}, v{160+r}, v{176+r}")
        for r in range(16):
            a(f"v_add_f32 v{128+r}, v{128+r}, v{160+r}")
        for r in range(16):
            a(f"v_mul_f32 v{128+r}, v{128+r}, v{48+4*t}")
        for i in range(8):
            a(f"v_cvt_pk_bf16_f32 v{112+8*t+i}, v{128+2*i}, v{129+2*i}")
        for e in range(2):
            r = 112 + 8 * t + 4 * e
            off = " offset:1024" if e else ""
            a.vm(f"buffer_store_dwordx4 v[{r}:{r+3}], v35, s[40:43], s{58+t} offen{off}", "st")
    a.label("L1_done")
    a("s_endpgm")


def gen_k2(a):
    a.raw(".globl oproj_kernel\n.p2align 8\n.type oproj_kernel,@function")
    a.label("oproj_kernel")
    a("s_cmp_ge_u32 s2, 256")
    a("s_cbranch_scc1 L2_done")
    a("s_load_dwordx2 s[14:15], s[0:1], 40")
    a("s_load_dwordx2 s[18:19], s[0:1], 56")
    a("s_and_b32 s44, s2, 7")
    a("s_lshr_b32 s45, s2, 3")
    a("s_and_b32 s46, s44, 3"); a("s_lshl_b32 s46, s46, 2"); a("s_and_b32 s47, s45, 3"); a("s_add_u32 s46, s46, s47")
    a("s_lshr_b32 s48, s44, 2"); a("s_lshl_b32 s48, s48, 3"); a("s_lshr_b32 s47, s45, 2"); a("s_add_u32 s48, s48, s47")
    a("v_lshrrev_b32 v1, 6, v0")
    a("v_and_b32 v2, 63, v0")
    a("v_lshlrev_b32 v3, 4, v2")
    a("v_lshl_add_u32 v4, v1, 16, v3")
    a("s_waitcnt lgkmcnt(0)")
    srd(a, 40, 18, 19, WS_BYTES)
    srd(a, 36, 14, 15, 8 * 64 * 512 * 2)
    a("s_lshl_b32 s50, s48, 18"); a(f"s_add_u32 s50, s50, {WOF_BASE}")
    a("s_lshl_b32 s51, s46, 18")
    NB = 8
    NSET = 4
    def regA(set_, i): return set_ * 64 + i * 8
    def issue(bt):
        set_ = bt % NSET
        for half in range(NB // 4):
            a(f"s_add_u32 s{60+half*2}, s50, {(bt*NB+half*4)*1024}")
            a(f"s_add_u32 s{61+half*2}, s51, {(bt*NB+half*4)*1024}")
            for i in range(4):
                r = regA(set_, half * 4 + i)
                off = f" offset:{i*1024}" if i else ""
                a.vm(f"buffer_load_dwordx4 a[{r}:{r+3}], v4, s[40:43], s{60+half*2} offen{off}", f"b{bt}_{half*4+i}")
                a.vm(f"buffer_load_dwordx4 a[{r+4}:{r+7}], v4, s[40:43], s{61+half*2} offen{off}", f"b{bt}_{half*4+i}")
    nbt = 64 // NB
    for bt in range(3):
        issue(bt)
    for bt in range(nbt):
        set_ = bt % NSET
        for i in range(NB):
            a.wait(vm=f"b{bt}_{i}")
            if i == 0 and bt + 3 < nbt:
                issue(bt + 3)
            r = regA(set_, i)
            c_ = "0" if (bt == 0 and i == 0) else "v[16:31]"
            a(f"v_mfma_f32_32x32x16_bf16 v[16:31], a[{r}:{r+3}], a[{r+4}:{r+7}], {c_}")
    a("v_lshl_add_u32 v5, v1, 12, v3")
    for g in range(4):
        a.lds(f"ds_write_b128 v5, v[{16+4*g}:{19+4*g}] offset:{g*1024}", "w")
    a.wait(lds="all")
    a("s_barrier")
    a("v_lshl_add_u32 v5, v1, 10, v3")
    for ws_ in range(4):
        a.lds(f"ds_read_b128 v[{32+4*ws_}:{35+4*ws_}], v5 offset:{ws_*4096}", "r")
    a("v_and_b32 v6, 31, v2")
    a("v_lshrrev_b32 v7, 5, v2")
    a("v_lshlrev_b32 v6, 10, v6")
    a("v_lshl_add_u32 v6, v7, 3, v6")
    a("v_lshl_add_u32 v6, v1, 4, v6")
    a("s_lshl_b32 s52, s46, 15"); a("s_lshl_b32 s53, s48, 6"); a("s_add_u32 s52, s52, s53")
    a.wait(lds="all")
    for i in range(4):
        a(f"v_add_f32 v{32+i}, v{32+i}, v{36+i}")
        a(f"v_add_f32 v{40+i}, v{40+i}, v{44+i}")
    for i in range(4):
        a(f"v_add_f32 v{32+i}, v{32+i}, v{40+i}")
    a("v_cvt_pk_bf16_f32 v48, v32, v33")
    a("v_cvt_pk_bf16_f32 v49, v34, v35")
    a.vm("buffer_store_dwordx2 v[48:49], v6, s[36:39], s52 offen", "st")
    a.label("L2_done")
    a("s_endpgm")


def desc(name, vgpr, accum, sgpr=102):
    return f""".amdhsa_kernel {name}
  .amdhsa_next_free_vgpr {vgpr}
  .amdhsa_next_free_sgpr {sgpr}
  .amdhsa_accum_offset {accum}
  .amdhsa_group_segment_fixed_size 0
  .amdhsa_kernarg_size 64
  .amdhsa_user_sgpr_count 2
  .amdhsa_user_sgpr_kernarg_segment_ptr 1
  .amdhsa_system_sgpr_workgroup_id_x 1
.end_amdhsa_kernel
"""


def main():
    hdr = open("standalone__gqa_block_cached__near_ridge.s.ref").read().split("\n")
    hdr = [l for l in hdr if l.startswith(";") and "launch" not in l.lower()]
    txt = "\n".join(hdr) + "\n"
    txt += "; @launch kernel=attn_kernel grid=(256,1,1) block=(256,1,1) lds=163840\n"
    txt += "; @launch kernel=oproj_kernel grid=(256,1,1) block=(256,1,1) lds=16384\n"
    txt += '.amdgcn_target "amdgcn-amd-amdhsa--gfx950"\n.text\n'
    a1 = Asm(); gen_k1(a1)
    a2 = Asm(); gen_k2(a2)
    txt += a1.text() + a2.text()
    txt += '.section .rodata,"a"\n.p2align 6\n' + desc("attn_kernel", 512, 256)
    txt += ".p2align 6\n" + desc("oproj_kernel", 64 + 256, 64)
    open(OUT, "w").write(txt)
    print("k1 lines", len(a1.lines), "nops", a1.nops, " k2 lines", len(a2.lines), "nops", a2.nops)


main()
```

```python
import sys, math, struct
from asmlib import Asm

OUT = sys.argv[1] if len(sys.argv) > 1 and not sys.argv[1].startswith("--") else "standalone__gqa_block_cached__near_ridge.s"

STAMP = "--stamp" in sys.argv
PREFETCH = "--nopf" not in sys.argv
K2NOROT = True
PV_HEAD = 20
PV_PER = 6
K2MAP = 2
for _a in sys.argv:
    if _a.startswith("--k2map="): K2MAP = int(_a[8:])
WOF_BASE = 4 << 20
WS_BYTES = 8 << 20

def f32bits(x):
    return struct.unpack("<I", struct.pack("<f", x))[0]

SCALE_LOG2E = (128 ** -0.5) * math.log2(math.e)

QS = [i * 24576 for i in range(6)]
QBUF = [0, 1, 2, 3, 4, 5, 0, 1]
KU = [[18, 19, 6, 7, 8, 9, 10, 11], [12, 13, 14, 15, 16, 17, 0, 1]]
QX = 16384
MX = QX + 16384
LX = 18 * 8192


def slot_base(kb):
    return (KV_EARLY + kb * 8192) if kb < 2 else (KV_LATE + (kb - 2) * 8192)


def srd(a, d, lo, hi, nbytes):
    a(f"s_mov_b32 s{d}, s{lo}")
    a(f"s_mov_b32 s{d+1}, s{hi}")
    if isinstance(nbytes, int):
        a(f"s_mov_b32 s{d+2}, {nbytes}")
    else:
        a(f"s_mov_b32 s{d+2}, s{nbytes[1:]}")
    a(f"s_mov_b32 s{d+3}, 0x00020000")


_stamps = []
STAMPSET = None
for _arg in sys.argv:
    if _arg.startswith("--stamps="):
        STAMPSET = _arg[9:].split(",")
def stamp(a, name):
    if not STAMP or (STAMPSET is not None and name not in STAMPSET):
        return
    i = len(_stamps)
    _stamps.append(name)
    a.wait(lds="all")
    a("s_memtime s[78:79]")
    a("s_waitcnt lgkmcnt(0)")
    a(f"s_mov_b32 s{80+i}, s78")

def dump_stamps(a):
    if not STAMP:
        return
    a("s_cmp_lg_u32 s2, 37")
    a("s_cbranch_scc1 L1_nostamp")
    a("s_and_b32 s59, s49, 3")
    a("s_cmp_lg_u32 s59, 0")
    a("s_cbranch_scc1 L1_nostamp")
    srd(a, 20, 16, 17, 256)
    a("s_lshl_b32 s59, s49, 5")
    for i in range(len(_stamps)):
        a(f"v_mov_b32 v3, s{80+i}")
        a(f"v_mov_b32 v4, {4*i}")
        a(f"buffer_store_dword v3, v4, s[20:23], s59 offen")
        a("s_waitcnt vmcnt(0)")
    a.label("L1_nostamp")
    print("stamps:", _stamps)

def gen_k1(a):
    a.raw(".globl attn_kernel\n.p2align 8\n.type attn_kernel,@function")
    a.label("attn_kernel")
    a("s_cmp_ge_u32 s2, 256")
    a("s_cbranch_scc1 L1_done")
    a("s_load_dwordx16 s[4:19], s[0:1], 0")
    a("s_and_b32 s44, s2, 7")
    a("s_lshr_b32 s45, s2, 3")
    a("s_lshr_b32 s46, s45, 2")
    a("s_and_b32 s47, s45, 3")
    a("s_lshl_b32 s48, s44, 2")
    a("s_add_u32 s48, s48, s47")
    a("v_lshrrev_b32 v1, 6, v0")
    a("v_and_b32 v2, 63, v0")
    a("v_readfirstlane_b32 s49, v1")
    a("v_and_b32 v50, 3, v1")
    a("v_lshrrev_b32 v51, 2, v1")
    a("v_lshrrev_b32 v3, 4, v2")
    a("v_and_b32 v4, 15, v2")
    a("v_lshlrev_b32 v5, 2, v3")
    a("v_xor_b32 v5, v4, v5")
    a("v_lshlrev_b32 v5, 4, v5")
    a("v_lshl_add_u32 v8, v3, 13, v5")
    a("v_lshl_add_u32 v9, v3, 8, v5")
    a("v_lshl_add_u32 v6, v50, 2, v3")
    a("v_xor_b32 v6, v4, v6")
    a("v_lshlrev_b32 v6, 4, v6")
    a("v_lshl_add_u32 v10, v3, 8, v6")
    a("v_lshrrev_b32 v6, 3, v2")
    a("v_and_b32 v7, 7, v2")
    a("v_and_b32 v36, 1, v1")
    a("v_lshl_add_u32 v36, v36, 2, v3")
    a("v_and_b32 v36, 7, v36")
    a("v_xor_b32 v36, v7, v36")
    a("v_lshlrev_b32 v36, 4, v36")
    a("v_lshl_add_u32 v14, v6, 10, v36")
    a("v_lshlrev_b32 v16, 4, v7")
    a("v_lshl_add_u32 v16, v6, 10, v16")
    a("v_lshl_add_u32 v16, v1, 7, v16")
    a("v_lshrrev_b32 v36, 5, v2")
    a("v_and_b32 v37, 31, v2")
    a("v_and_b32 v38, 1, v3")
    a("v_lshrrev_b32 v39, 2, v2")
    a("v_and_b32 v39, 3, v39")
    a("v_and_b32 v40, 3, v2")
    a("v_lshrrev_b32 v41, 1, v40")
    a("v_and_b32 v42, 1, v40")
    a("v_lshlrev_b32 v43, 2, v39")
    a("v_lshl_add_u32 v43, v38, 1, v43")
    a("v_lshl_add_u32 v48, v36, 3, v39")
    a("v_lshlrev_b32 v47, 7, v48")
    a("v_lshl_add_u32 v47, v38, 5, v47")
    a("v_lshl_add_u32 v47, v40, 3, v47")
    a("v_lshlrev_b32 v48, 8, v48")
    a("v_add_u32 v49, v43, v41")
    a("v_lshl_add_u32 v48, v49, 4, v48")
    a("v_lshl_add_u32 v48, v42, 3, v48")
    a("v_lshlrev_b32 v49, 6, v50")
    a("v_xor_b32 v17, v48, v49")
    a("v_lshl_add_u32 v48, v36, 2, v39")
    a("v_lshlrev_b32 v48, 8, v48")
    a("v_add_u32 v52, v43, v42")
    a("v_lshl_add_u32 v48, v52, 4, v48")
    a("v_lshl_add_u32 v48, v41, 3, v48")
    a("v_xor_b32 v30, v48, v49")
    a(f"v_add_u32 v31, 65536, v30")
    a(f"v_add_u32 v32, 131072, v30")
    a("v_lshrrev_b32 v48, 1, v37")
    a("v_and_b32 v48, 7, v48")
    a("v_xor_b32 v48, v36, v48")
    a("v_lshlrev_b32 v48, 4, v48")
    a("v_lshl_add_u32 v48, v37, 7, v48")
    a("v_lshl_add_u32 v48, v51, 12, v48")
    for kc in range(4):
        a(f"v_xor_b32 v{18+kc}, {kc<<5}, v48")
    a("v_and_b32 v48, 15, v37")
    a("v_xor_b32 v48, v36, v48")
    a("v_lshlrev_b32 v48, 4, v48")
    a("v_lshl_add_u32 v48, v37, 8, v48")
    for c in range(8):
        a(f"v_xor_b32 v{22+c}, {c<<5}, v48")
    a("v_and_b32 v48, 15, v37")
    a("v_lshlrev_b32 v49, 2, v50")
    a("v_xor_b32 v48, v48, v49")
    a("v_lshlrev_b32 v48, 4, v48")
    a("v_lshl_add_u32 v48, v37, 8, v48")
    a("v_lshl_add_u32 v48, v51, 13, v48")
    a("v_lshl_add_u32 v34, v36, 3, v48")
    a("v_lshlrev_b32 v35, 4, v2")
    a("v_mov_b32 v46, v37")
    a("v_mov_b32 v45, v51")
    a("s_waitcnt lgkmcnt(0)")
    a("s_lshl_b32 s50, s46, 16")
    a("s_add_u32 s4, s4, s50"); a("s_addc_u32 s5, s5, 0")
    srd(a, 20, 4, 5, 65536)
    a("s_lshl_b32 s50, s46, 20"); a("s_lshl_b32 s51, s44, 17"); a("s_add_u32 s50, s50, s51")
    a("s_add_u32 s6, s6, s50"); a("s_addc_u32 s7, s7, 0")
    srd(a, 24, 6, 7, 131072)
    a("s_add_u32 s8, s8, s50"); a("s_addc_u32 s9, s9, 0")
    srd(a, 28, 8, 9, 131072)
    a("s_lshl_b32 s50, s48, 8")
    a("s_add_u32 s10, s10, s50"); a("s_addc_u32 s11, s11, 0")
    a(f"s_sub_u32 s51, {512*4096*2}, s50")
    srd(a, 32, 10, 11, "s51")
    a("s_lshl_b32 s50, s2, 14")
    a("s_add_u32 s12, s12, s50"); a("s_addc_u32 s13, s13, 0")
    srd(a, 36, 12, 13, 16384)
    srd(a, 40, 18, 19, WS_BYTES)
    a("s_lshl_b32 s52, s49, 10")
    a("s_lshl_b32 s53, s49, 15")
    a("s_lshl_b32 s54, s49, 11")
    a("s_lshl_b32 s55, s49, 13")
    a("s_lshl_b32 s56, s49, 14")
    a(f"s_mov_b32 s57, {f32bits(SCALE_LOG2E)}")
    rot = [0]
    NT = " nt"
    a("s_lshl_b32 s58, s47, 1")
    a("s_add_u32 s58, s58, s46")
    a("s_mov_b32 s68, 0")
    a("s_mov_b32 s69, 8192")

    def sreg_next():
        r = 60 + rot[0] % 8
        rot[0] += 1
        return r

    def q_items(s):
        buf = QS[QBUF[s]]
        items = []
        def pre():
            a(f"s_add_u32 s59, s58, {s}")
            a("s_and_b32 s59, s59, 7")
            a("s_lshl_b32 s74, s59, 19")
            a("s_add_u32 s74, s74, s53")
            a("s_lshl_b32 s75, s59, 7")
            a("s_add_u32 s75, s75, s55")
        for j in range(2):
            def f(j=j):
                if j == 0:
                    pre()
                r = sreg_next()
                a(f"s_add_u32 m0, s52, {buf + j*8192}")
                a(f"s_add_u32 s{r}, s74, {j*262144}")
                a.vm(f"buffer_load_dwordx4 v8, s[32:35], s{r} offen{NT} lds", f"Q{s}")
            items.append(f)
        def f():
            a(f"s_add_u32 m0, s52, {buf + 16384}")
            a.vm(f"buffer_load_dwordx4 v14, s[20:23], s75 offen lds", f"Q{s}")
        items.append(f)
        return items

    a("s_add_u32 s59, s49, 18"); a("s_add_u32 s70, s49, 4")
    a("s_cmp_lt_u32 s49, 2"); a("s_cselect_b32 s70, s59, s70"); a("s_lshl_b32 s70, s70, 13")
    a("s_add_u32 s59, s49, 12"); a("s_sub_u32 s71, s49, 6")
    a("s_cmp_lt_u32 s49, 6"); a("s_cselect_b32 s71, s59, s71"); a("s_lshl_b32 s71, s71, 13")
    a("s_and_b32 s72, s47, 1"); a("s_lshl_b32 s72, s72, 13"); a("s_xor_b32 s73, s72, 8192")
    a("s_add_u32 s72, s72, s52"); a("s_add_u32 s73, s73, s52")

    def k_item(kb, ws_):
        def f():
            r = sreg_next()
            a(f"s_add_u32 m0, s52, {KU[kb][ws_] * 8192}")
            a(f"s_add_u32 s{r}, s{72+kb}, {ws_ * 16384}")
            a.vm(f"buffer_load_dwordx4 v10, s[24:27], s{r} offen{NT} lds", f"K{kb}")
        return f

    def v_items(kb):
        items = []
        for half in range(2):
            for i in range(4):
                def f(half=half, i=i):
                    if i == 0:
                        a(f"s_sub_u32 s76, s{72+kb}, s52")
                        a("s_add_u32 s76, s76, s56")
                        if half:
                            a("s_add_u32 s76, s76, 4096")
                    a(f"s_add_u32 m0, s{70+kb}, {half*4096}")
                    off = f" offset:{i*1024}" if i else ""
                    a.vm(f"buffer_load_dwordx4 v9, s[28:31], s76 offen{off}{NT} lds", f"V{kb}")
                items.append(f)
        return items

    def wo_items():
        return [lambda i=i: a.vm(f"buffer_load_dwordx4 v[{56+4*i}:{59+4*i}], v16, s[36:39], s{68+i} offen{NT}", "WO")
                for i in range(2)]

    def interleave(main, side, every=1, per=1, first=0):
        side = list(side)
        for i, m in enumerate(main):
            m()
            if i >= first and (i - first) % every == 0:
                for _ in range(per):
                    if side:
                        side.pop(0)()
        for f in side:
            f()

    if STAMP:
        a("s_memrealtime s[96:97]")
        a("s_waitcnt lgkmcnt(0)")
    stamp(a, "start")
    for s in range(6):
        for f in q_items(s):
            f()
    k_item(0, 0)(); k_item(0, 1)()

    QACC = 0
    stamp(a, "issued")
    for s in range(8):
        a.comment(f"---- Q stage {s}")
        a.wait(vm=f"Q{s}")
        a("s_barrier")
        if s in (0,): stamp(a, f"Qs{s}")
        side = {0: wo_items(), 1: q_items(6), 2: q_items(7),
                3: [k_item(0, w_) for w_ in (2, 3, 4)], 4: [k_item(0, w_) for w_ in (5, 6, 7)],
                5: [k_item(1, w_) for w_ in (0, 1, 2)], 6: [k_item(1, w_) for w_ in (3, 4, 5)],
                7: [k_item(1, w_) for w_ in (6, 7)]}[s]
        buf = QS[QBUF[s]]
        a(f"v_add_u32 v36, {buf}, v17")
        for kc in range(4):
            a(f"v_add_u32 v{37+kc}, {buf + 16384}, v{18+kc}")
        for kc in range(4):
            a.lds(f"ds_read_b64_tr_b16 v[{64+4*kc}:{65+4*kc}], v36 offset:{kc*4096}", f"f{kc}")
            a.lds(f"ds_read_b64_tr_b16 v[{66+4*kc}:{67+4*kc}], v36 offset:{kc*4096+1024}", f"f{kc}")
            a.lds(f"ds_read_b128 v[{80+4*kc}:{83+4*kc}], v{37+kc}", f"f{kc}")
        main = []
        for kc in range(4):
            def f(kc=kc):
                a.wait(lds=f"f{kc}")
                acc = f"a[{QACC}:{QACC+15}]"
                c_ = "0" if (s == 0 and kc == 0) else acc
                a(f"v_mfma_f32_32x32x16_bf16 {acc}, v[{64+4*kc}:{67+4*kc}], v[{80+4*kc}:{83+4*kc}], {c_}")
            main.append(f)
        interleave(main, side)
    stamp(a, "Qdone")
    a("s_barrier")
    stamp(a, "Qx b1")
    for gg in range(4):
        b0 = 64 + gg * 8
        for i in range(4):
            a(f"v_accvgpr_read_b32 v{b0+i}, a{QACC+4*gg+i}")
        a(f"v_cvt_pk_bf16_f32 v{b0+4}, v{b0}, v{b0+1}")
        a(f"v_cvt_pk_bf16_f32 v{b0+5}, v{b0+2}, v{b0+3}")
        a(f"v_xor_b32 v{b0+6}, {gg<<4}, v34")
        a(f"v_add_u32 v{b0+6}, {QX}, v{b0+6}")
        a.lds(f"ds_write_b64 v{b0+6}, v[{b0+4}:{b0+5}]", "qw")
    for c in range(8):
        a(f"v_add_u32 v{36+c}, {QX}, v{22+c}")
    a.wait(lds="all", vm="K0")
    stamp(a, "Qx w")
    a("s_barrier")
    stamp(a, "Qx b2")
    QB = 16
    for t in range(2):
        for c in range(8):
            r = QB + (t * 8 + c) * 4
            a.lds(f"ds_read_b128 a[{r}:{r+3}], v{36+c} offset:{t*8192}", f"qr{t}")
        if t == 0:
            a.wait(lds="all")

    stamp(a, "Qx done")
    def S(kb, t, r):
        return 64 + (kb * 2 + t) * 16 + r
    def kfrag(kb, c):
        return f"v[{96+4*c}:{99+4*c}]" if kb == 0 else f"a[{80+4*c}:{83+4*c}]"
    def kreads(kb):
        for c in range(8):
            a(f"v_add_u32 v{36+c}, s{70+kb}, v{22+c}")
        for c in range(8):
            a.lds(f"ds_read_b128 {kfrag(kb,c)}, v{36+c}", f"k{kb}")
    a.wait(lds="all")
    kreads(0)
    for kb in range(2):
        a.wait(lds=f"k{kb}")
        main = []
        for c in range(8):
            for t in range(2):
                def f(c=c, t=t):
                    sacc = f"v[{S(kb,t,0)}:{S(kb,t,15)}]"
                    r = QB + (t * 8 + c) * 4
                    c_ = "0" if c == 0 else sacc
                    a(f"v_mfma_f32_32x32x16_bf16 {sacc}, {kfrag(kb,c)}, a[{r}:{r+3}], {c_}")
                main.append(f)
        if kb == 1: stamp(a, "S0 done")
        if kb == 0:
            def kb1():
                stamp(a, "K1 pre")
                a.wait(vm="K1")
                stamp(a, "K1 w")
                a("s_barrier")
                stamp(a, "K1 b")
                kreads(1)
            vq = v_items(0)
            interleave(main[:8], [vq.pop(0), vq.pop(0)], every=4, first=1)
            kb1()
            interleave(main[8:], [vq.pop(0), vq.pop(0)], every=4, first=1)
        else:
            interleave(main, vq, every=4, first=1)
            vq = v_items(1)

    stamp(a, "S done")
    lists = [[S(kb, t, r) for kb in range(2) for r in range(16)] for t in range(2)]
    for t in range(2):
        for ch in range(2):
            L = lists[t][16 * ch:16 * ch + 16]
            a(f"v_max3_f32 v{48+2*t+ch}, v{L[0]}, v{L[1]}, v{L[2]}")
    for i in range(3, 15, 2):
        for t in range(2):
            for ch in range(2):
                L = lists[t][16 * ch:16 * ch + 16]
                a(f"v_max3_f32 v{48+2*t+ch}, v{48+2*t+ch}, v{L[i]}, v{L[i+1]}")
        if i in (3, 11):
            vq.pop(0)()
    for t in range(2):
        L0 = lists[t][15]; L1 = lists[t][31]
        a(f"v_max3_f32 v{48+2*t}, v{48+2*t}, v{L0}, v{L1}")
        a(f"v_max_f32 v{48+2*t}, v{48+2*t}, v{49+2*t}")
    for t in range(2):
        a(f"v_mov_b32 v{49+2*t}, v{48+2*t}")
    a("v_lshlrev_b32 v36, 5, v46")
    a(f"v_add_u32 v36, {MX}, v36")
    a("v_lshl_add_u32 v37, v1, 2, v36")
    for t in range(2):
        a(f"v_permlane32_swap_b32 v{48+2*t}, v{49+2*t}")
    for t in range(2):
        a(f"v_max_f32 v{48+2*t}, v{48+2*t}, v{49+2*t}")
    for t in range(2):
        a.lds(f"ds_write_b32 v37, v{48+2*t} offset:{t*1024}", "mw")
    a("v_add_u32 v38, s54, v35")
    a(f"v_add_u32 v38, {QX}, v38")
    stamp(a, "max pre")
    a.wait(lds="all", vm="WO")
    stamp(a, "max wo")
    a("s_barrier")
    stamp(a, "max b")
    for t in range(2):
        for hh in range(2):
            r = 128 + 8 * t + 4 * hh
            a.lds(f"ds_read_b128 v[{r}:{r+3}], v36 offset:{t*1024 + hh*16}", "mr")
    for i in range(2):
        a.lds(f"ds_write_b128 v38, v[{56+4*i}:{59+4*i}] offset:{i*1024}", "wow")
    a("v_add_u32 v39, s54, v47")
    a(f"v_add_u32 v39, {QX}, v39")
    a("s_lshl_b32 s58, s49, 19")
    a("s_lshl_b32 s59, s2, 10")
    a("s_add_u32 s58, s58, s59")
    for t in range(2):
        a(f"v_mov_b32 v{50+2*t}, 0")
        a(f"v_mov_b32 v{51+2*t}, 0")
    a("v_lshl_add_u32 v42, v45, 10, v35")
    a(f"v_add_u32 v42, {QX}, v42")
    a.wait(lds="mr")
    for t in range(2):
        r = 128 + 8 * t
        a(f"v_max3_f32 v{r}, v{r}, v{r+1}, v{r+2}")
        a(f"v_max3_f32 v{r+3}, v{r+3}, v{r+4}, v{r+5}")
        a(f"v_max3_f32 v{r}, v{r}, v{r+6}, v{r+7}")
        a(f"v_max_f32 v{r}, v{r}, v{r+3}")
        a(f"v_mul_f32 v{48+t}, s57, v{r}")
    stamp(a, "max done")

    def exp_items(j):
        kb, u = j >> 1, j & 1
        it = []
        for t in range(2):
            R = [S(kb, t, 8 * u + r) for r in range(8)]
            for r in R:
                it.append(lambda t=t, r=r: a(f"v_fma_f32 v{r}, v{r}, s57, -v{48+t}"))
        for t in range(2):
            R = [S(kb, t, 8 * u + r) for r in range(8)]
            for r in R:
                it.append(lambda t=t, r=r: a(f"v_exp_f32 v{r}, v{r}"))
        for t in range(2):
            R = [S(kb, t, 8 * u + r) for r in range(8)]
            for r in R:
                it.append(lambda t=t, r=r: a(f"v_add_f32 v{50+2*t+(r&1)}, v{50+2*t+(r&1)}, v{r}"))
            for i in range(4):
                it.append(lambda t=t, i=i, R=R: a(f"v_cvt_pk_bf16_f32 v{R[i]}, v{R[2*i]}, v{R[2*i+1]}"))
        return it

    def pv_parts(j):
        kb, u = j >> 1, j & 1
        def rd(ws_):
            fb = 16 + 8 * ws_
            ad = KU[kb][ws_] * 8192 + u * 4096
            vb = 30 + (ad >> 16)
            ad &= 65535
            a.lds(f"ds_read_b64_tr_b16 a[{fb}:{fb+1}], v{vb} offset:{ad}", f"p{ws_}")
            a.lds(f"ds_read_b64_tr_b16 a[{fb+2}:{fb+3}], v{vb} offset:{ad + 2048}", f"p{ws_}")
            a.lds(f"ds_read_b128 a[{fb+4}:{fb+7}], v42 offset:{(j&1)*16384 + ws_*2048}", f"p{ws_}")
        def mf(ws_):
            a.wait(lds=f"p{ws_}")
            if ws_ + 4 < 8:
                rd(ws_ + 4)
            fb = 16 + 8 * ws_
            c_ = "0" if (j == 0 and ws_ == 0) else "a[0:15]"
            a(f"v_mfma_f32_32x32x16_bf16 a[0:15], a[{fb}:{fb+3}], a[{fb+4}:{fb+7}], {c_}")
        return rd, mf

    def p_write(j):
        kb, u = j >> 1, j & 1
        for t in range(2):
            p = S(kb, t, 8 * u)
            a.lds(f"ds_write_b128 v38, v[{p}:{p+3}] offset:{(j&1)*16384 + t*1024}", "pw")

    def l_items():
        def f():
            for t in range(2):
                a(f"v_add_f32 v{50+2*t}, v{50+2*t}, v{51+2*t}")
                a(f"v_mov_b32 v{51+2*t}, v{50+2*t}")
            a(f"v_add_u32 v37, {LX - MX}, v37")
            for t in range(2):
                a(f"v_permlane32_swap_b32 v{50+2*t}, v{51+2*t}")
            for t in range(2):
                a(f"v_add_f32 v{50+2*t}, v{50+2*t}, v{51+2*t}")
            for t in range(2):
                a.lds(f"ds_write_b32 v37, v{50+2*t} offset:{t*1024}", "lw")
        return f

    ex = exp_items(0)
    vq.pop(0)()
    for f in ex[:16]:
        f()
    vq.pop(0)()
    a.wait(lds="wow")
    for i in range(2):
        a.lds(f"ds_read_b64_tr_b16 v[{56+4*i}:{57+4*i}], v39 offset:{i*64}", "wo")
        a.lds(f"ds_read_b64_tr_b16 v[{58+4*i}:{59+4*i}], v39 offset:{i*64+512}", "wo")
    for f in ex[16:36]:
        f()
    vq.pop(0)()
    for f in ex[36:]:
        f()
    a.wait(lds="wo")
    p_write(0)
    for i in range(2):
        a(f"s_add_u32 s{68+i}, s58, {WOF_BASE + i * 262144}")
        a.vm(f"buffer_store_dwordx4 v[{56+4*i}:{59+4*i}], v35, s[40:43], s{68+i} offen sc0 sc1", "st")
    stamp(a, "exp0")
    a.wait(lds="all", vm="V0")
    a("s_barrier")
    stamp(a, "B0")
    for j in range(1, 4):
        rd, mf = pv_parts(j - 1)
        ex = exp_items(j)
        for q_ in range(4):
            rd(q_)
        for f in ex[:PV_HEAD]:
            f()
        ex = ex[PV_HEAD:]
        done = False
        for ws_ in range(8):
            mf(ws_)
            if vq and ws_ % 3 == 0:
                vq.pop(0)()
            for _ in range(PV_PER):
                if ex:
                    ex.pop(0)()
            if not ex and not done:
                done = True
                p_write(j)
                if j == 3:
                    l_items()()
        assert done
        if j == 1: stamp(a, "pv0exp1")
        stamp(a, f"e{j} pre")
        a.wait(lds="all", vm=("V1" if j == 2 else None))
        stamp(a, f"e{j} w")
        a("s_barrier")
        stamp(a, f"e{j} b")
    stamp(a, "exp done")
    a(f"v_add_u32 v36, {LX - MX}, v36")
    a("v_lshl_add_u32 v36, v45, 10, v36")
    for hh in range(2):
        a.lds(f"ds_read_b128 v[{128+4*hh}:{131+4*hh}], v36 offset:{hh*16}", "lr")
    rd, mf = pv_parts(3)
    for q_ in range(4):
        rd(q_)
    a("s_lshl_b32 s58, s46, 19"); a("s_lshl_b32 s59, s48, 13"); a("s_add_u32 s58, s58, s59")
    a("s_and_b32 s59, s49, 3"); a("s_lshl_b32 s59, s59, 11"); a("s_add_u32 s58, s58, s59")
    a("s_lshr_b32 s59, s49, 2"); a("s_lshl_b32 s59, s59, 18"); a("s_add_u32 s58, s58, s59")
    def lfin():
        for i in range(4):
            a(f"v_add_f32 v{128+i}, v{128+i}, v{132+i}")
        a("v_add_f32 v128, v128, v129")
        a("v_add_f32 v130, v130, v131")
        a("v_add_f32 v128, v128, v130")
        a("v_rcp_f32 v128, v128")
    rd, mf = pv_parts(3)
    for ws_ in range(8):
        mf(ws_)
        if ws_ == 1:
            lfin()
    stamp(a, "PV done")
    for r in range(16):
        a(f"v_accvgpr_read_b32 v{64+r}, a{r}")
    for r in range(16):
        a(f"v_mul_f32 v{64+r}, v{64+r}, v128")
    for i in range(8):
        a(f"v_cvt_pk_bf16_f32 v{80+i}, v{64+2*i}, v{65+2*i}")
    for e in range(2):
        r = 80 + 4 * e
        off = " offset:1024" if e else ""
        a.vm(f"buffer_store_dwordx4 v[{r}:{r+3}], v35, s[40:43], s58 offen{off} sc0 sc1", "st")
    a.wait(vm="all")
    stamp(a, "end")
    if STAMP:
        a("s_memrealtime s[98:99]")
        a("s_waitcnt lgkmcnt(0)")
        a("s_sub_u32 s96, s98, s96")
    dump_stamps(a)
    a.label("L1_done")
    a("s_endpgm")


def gen_k2(a):
    a.raw(".globl oproj_kernel\n.p2align 8\n.type oproj_kernel,@function")
    a.label("oproj_kernel")
    a("s_cmp_ge_u32 s2, 256")
    a("s_cbranch_scc1 L2_done")
    a("s_load_dwordx2 s[14:15], s[0:1], 40")
    a("s_load_dwordx2 s[18:19], s[0:1], 56")
    a("s_and_b32 s44, s2, 7")
    a("s_lshr_b32 s45, s2, 3")
    lm = K2MAP; ln = 5 - K2MAP
    mg = 4 - lm
    a(f"s_and_b32 s46, s44, {(1<<mg)-1}"); a(f"s_lshl_b32 s46, s46, {lm}"); a(f"s_and_b32 s47, s45, {(1<<lm)-1}"); a("s_add_u32 s46, s46, s47")
    a(f"s_lshr_b32 s48, s44, {mg}"); a(f"s_lshl_b32 s48, s48, {ln}"); a(f"s_lshr_b32 s47, s45, {lm}"); a("s_add_u32 s48, s48, s47")
    a("v_lshrrev_b32 v1, 6, v0")
    a("v_and_b32 v2, 63, v0")
    a("v_lshlrev_b32 v3, 4, v2")
    a("v_lshl_add_u32 v4, v1, 16, v3")
    a("s_waitcnt lgkmcnt(0)")
    srd(a, 40, 18, 19, WS_BYTES)
    srd(a, 36, 14, 15, 8 * 64 * 512 * 2)
    a("s_lshl_b32 s50, s48, 18"); a(f"s_add_u32 s50, s50, {WOF_BASE}")
    a("s_lshl_b32 s51, s46, 18")
    NB = 8
    NSET = 4
    def regA(set_, i): return set_ * 64 + i * 8
    a("s_and_b32 s54, s45, 3"); a("s_lshl_b32 s54, s54, 1"); a("s_lshr_b32 s55, s45, 2"); a("s_add_u32 s54, s54, s55")
    if K2NOROT:
        a("s_mov_b32 s54, 0")
    def issue(bt):
        set_ = bt % NSET
        a(f"s_add_u32 s56, s54, {bt}")
        a("s_and_b32 s56, s56, 7")
        a("s_lshl_b32 s56, s56, 13")
        a("s_add_u32 s57, s56, s50")
        a("s_add_u32 s58, s56, s51")
        for half in range(NB // 4):
            a(f"s_add_u32 s{60+half*2}, s57, {half*4096}")
            a(f"s_add_u32 s{61+half*2}, s58, {half*4096}")
            for i in range(4):
                r = regA(set_, half * 4 + i)
                off = f" offset:{i*1024}" if i else ""
                a.vm(f"buffer_load_dwordx4 a[{r}:{r+3}], v4, s[40:43], s{60+half*2} offen{off}", f"b{bt}_{half*4+i}")
                a.vm(f"buffer_load_dwordx4 a[{r+4}:{r+7}], v4, s[40:43], s{61+half*2} offen{off}", f"b{bt}_{half*4+i}")
    nbt = 64 // NB
    for bt in range(3):
        issue(bt)
    for bt in range(nbt):
        set_ = bt % NSET
        for i in range(NB):
            a.wait(vm=f"b{bt}_{i}")
            if i == 0 and bt + 3 < nbt:
                issue(bt + 3)
            r = regA(set_, i)
            c_ = "0" if (bt == 0 and i == 0) else "v[16:31]"
            a(f"v_mfma_f32_32x32x16_bf16 v[16:31], a[{r}:{r+3}], a[{r+4}:{r+7}], {c_}")
    a("v_lshl_add_u32 v5, v1, 12, v3")
    for g in range(4):
        a.lds(f"ds_write_b128 v5, v[{16+4*g}:{19+4*g}] offset:{g*1024}", "w")
    a.wait(lds="all")
    a("s_barrier")
    a("v_lshl_add_u32 v5, v1, 10, v3")
    for ws_ in range(4):
        a.lds(f"ds_read_b128 v[{32+4*ws_}:{35+4*ws_}], v5 offset:{ws_*4096}", "r")
    a("v_and_b32 v6, 31, v2")
    a("v_lshrrev_b32 v7, 5, v2")
    a("v_lshlrev_b32 v6, 10, v6")
    a("v_lshl_add_u32 v6, v7, 3, v6")
    a("v_lshl_add_u32 v6, v1, 4, v6")
    a("s_lshl_b32 s52, s46, 15"); a("s_lshl_b32 s53, s48, 6"); a("s_add_u32 s52, s52, s53")
    a.wait(lds="all")
    for i in range(4):
        a(f"v_add_f32 v{32+i}, v{32+i}, v{36+i}")
        a(f"v_add_f32 v{40+i}, v{40+i}, v{44+i}")
    for i in range(4):
        a(f"v_add_f32 v{32+i}, v{32+i}, v{40+i}")
    a("v_cvt_pk_bf16_f32 v48, v32, v33")
    a("v_cvt_pk_bf16_f32 v49, v34, v35")
    a.vm("buffer_store_dwordx2 v[48:49], v6, s[36:39], s52 offen", "st")
    a.label("L2_done")
    a("s_endpgm")


def desc(name, vgpr, accum, sgpr=102):
    return f""".amdhsa_kernel {name}
  .amdhsa_next_free_vgpr {vgpr}
  .amdhsa_next_free_sgpr {sgpr}
  .amdhsa_accum_offset {accum}
  .amdhsa_group_segment_fixed_size 0
  .amdhsa_kernarg_size 64
  .amdhsa_user_sgpr_count 2
  .amdhsa_user_sgpr_kernarg_segment_ptr 1
  .amdhsa_system_sgpr_workgroup_id_x 1
.end_amdhsa_kernel
"""


def main():
    hdr = open("standalone__gqa_block_cached__near_ridge.s.ref").read().split("\n")
    hdr = [l for l in hdr if l.startswith(";") and "launch" not in l.lower()]
    txt = "\n".join(hdr) + "\n"
    txt += "; @launch kernel=attn_kernel grid=(256,1,1) block=(512,1,1) lds=163840\n"
    txt += "; @launch kernel=oproj_kernel grid=(256,1,1) block=(256,1,1) lds=16384\n"
    txt += '.amdgcn_target "amdgcn-amd-amdhsa--gfx950"\n.text\n'
    a1 = Asm(); gen_k1(a1)
    a2 = Asm(); gen_k2(a2)
    txt += a1.text() + a2.text()
    txt += '.section .rodata,"a"\n.p2align 6\n' + desc("attn_kernel", 256, 144)
    txt += ".p2align 6\n" + desc("oproj_kernel", 64 + 256, 64)
    open(OUT, "w").write(txt)
    print("k1 lines", len(a1.lines), "nops", a1.nops, " k2 lines", len(a2.lines), "nops", a2.nops)


main()
```

```python
import sys, math, struct
from asmlib import Asm

OUT = sys.argv[1] if len(sys.argv) > 1 and not sys.argv[1].startswith("--") else "standalone__gqa_block_cached__near_ridge.s"

STAMP = "--stamp" in sys.argv
PREFETCH = "--nopf" not in sys.argv
K2NOROT = True
NINIT = 6
for _a in sys.argv:
    if _a.startswith("--ninit="): NINIT = int(_a[8:])
PV_HEAD = 20
PV_PER = 6
PRIO = 0
for _a in sys.argv:
    if _a.startswith("--pvhead="): PV_HEAD = int(_a[9:])
    if _a.startswith("--pvper="): PV_PER = int(_a[8:])
    if _a.startswith("--prio="): PRIO = int(_a[7:])
K2MAP = 2
for _a in sys.argv:
    if _a.startswith("--k2map="): K2MAP = int(_a[8:])
WOF_BASE = 4 << 20
WS_BYTES = 8 << 20

def f32bits(x):
    return struct.unpack("<I", struct.pack("<f", x))[0]

SCALE_LOG2E = (128 ** -0.5) * math.log2(math.e)

QS = [i * 24576 for i in range(6)]
QBUF = [0, 1, 2, 3, 4, 5, 0, 1]
KU = [[18, 19, 6, 7, 8, 9, 10, 11], [12, 13, 14, 15, 16, 17, 0, 1]]
QX = 16384
MX = QX + 16384
LX = 18 * 8192


def slot_base(kb):
    return (KV_EARLY + kb * 8192) if kb < 2 else (KV_LATE + (kb - 2) * 8192)


def srd(a, d, lo, hi, nbytes):
    a(f"s_mov_b32 s{d}, s{lo}")
    a(f"s_mov_b32 s{d+1}, s{hi}")
    if isinstance(nbytes, int):
        a(f"s_mov_b32 s{d+2}, {nbytes}")
    else:
        a(f"s_mov_b32 s{d+2}, s{nbytes[1:]}")
    a(f"s_mov_b32 s{d+3}, 0x00020000")


_stamps = []
STAMPSET = None
for _arg in sys.argv:
    if _arg.startswith("--stamps="):
        STAMPSET = _arg[9:].split(",")
def stamp(a, name):
    if not STAMP or (STAMPSET is not None and name not in STAMPSET):
        return
    i = len(_stamps)
    _stamps.append(name)
    a.wait(lds="all")
    a("s_memtime s[78:79]")
    a("s_waitcnt lgkmcnt(0)")
    a(f"s_mov_b32 s{80+i}, s78")

def dump_stamps(a):
    if not STAMP:
        return
    a("s_cmp_lg_u32 s2, 37")
    a("s_cbranch_scc1 L1_nostamp")
    a("s_and_b32 s59, s49, 3")
    a("s_cmp_lg_u32 s59, 0")
    a("s_cbranch_scc1 L1_nostamp")
    srd(a, 20, 16, 17, 256)
    a("s_lshl_b32 s59, s49, 5")
    for i in range(len(_stamps)):
        a(f"v_mov_b32 v3, s{80+i}")
        a(f"v_mov_b32 v4, {4*i}")
        a(f"buffer_store_dword v3, v4, s[20:23], s59 offen")
        a("s_waitcnt vmcnt(0)")
    a.label("L1_nostamp")
    print("stamps:", _stamps)

def gen_k1(a):
    a.raw(".globl attn_kernel\n.p2align 8\n.type attn_kernel,@function")
    a.label("attn_kernel")
    a("s_cmp_ge_u32 s2, 256")
    a("s_cbranch_scc1 L1_done")
    a("s_load_dwordx16 s[4:19], s[0:1], 0")
    a("s_and_b32 s44, s2, 7")
    a("s_lshr_b32 s45, s2, 3")
    a("s_lshr_b32 s46, s45, 2")
    a("s_and_b32 s47, s45, 3")
    a("s_lshl_b32 s48, s44, 2")
    a("s_add_u32 s48, s48, s47")
    a("v_lshrrev_b32 v1, 6, v0")
    a("v_and_b32 v2, 63, v0")
    a("v_readfirstlane_b32 s49, v1")
    a("v_and_b32 v50, 3, v1")
    a("v_lshrrev_b32 v51, 2, v1")
    a("v_lshrrev_b32 v3, 4, v2")
    a("v_and_b32 v4, 15, v2")
    a("v_lshlrev_b32 v5, 2, v3")
    a("v_xor_b32 v5, v4, v5")
    a("v_lshlrev_b32 v5, 4, v5")
    a("v_lshl_add_u32 v8, v3, 13, v5")
    a("v_lshl_add_u32 v9, v3, 8, v5")
    a("v_lshl_add_u32 v6, v50, 2, v3")
    a("v_xor_b32 v6, v4, v6")
    a("v_lshlrev_b32 v6, 4, v6")
    a("v_lshl_add_u32 v10, v3, 8, v6")
    a("v_lshrrev_b32 v6, 3, v2")
    a("v_and_b32 v7, 7, v2")
    a("v_and_b32 v36, 1, v1")
    a("v_lshl_add_u32 v36, v36, 2, v3")
    a("v_and_b32 v36, 7, v36")
    a("v_xor_b32 v36, v7, v36")
    a("v_lshlrev_b32 v36, 4, v36")
    a("v_lshl_add_u32 v14, v6, 10, v36")
    a("v_lshlrev_b32 v16, 4, v7")
    a("v_lshl_add_u32 v16, v6, 10, v16")
    a("v_lshl_add_u32 v16, v1, 7, v16")
    a("v_lshrrev_b32 v36, 5, v2")
    a("v_and_b32 v37, 31, v2")
    a("v_and_b32 v38, 1, v3")
    a("v_lshrrev_b32 v39, 2, v2")
    a("v_and_b32 v39, 3, v39")
    a("v_and_b32 v40, 3, v2")
    a("v_lshrrev_b32 v41, 1, v40")
    a("v_and_b32 v42, 1, v40")
    a("v_lshlrev_b32 v43, 2, v39")
    a("v_lshl_add_u32 v43, v38, 1, v43")
    a("v_lshl_add_u32 v48, v36, 3, v39")
    a("v_lshlrev_b32 v47, 7, v48")
    a("v_lshl_add_u32 v47, v38, 5, v47")
    a("v_lshl_add_u32 v47, v40, 3, v47")
    a("v_lshlrev_b32 v48, 8, v48")
    a("v_add_u32 v49, v43, v41")
    a("v_lshl_add_u32 v48, v49, 4, v48")
    a("v_lshl_add_u32 v48, v42, 3, v48")
    a("v_lshlrev_b32 v49, 6, v50")
    a("v_xor_b32 v17, v48, v49")
    a("v_lshl_add_u32 v48, v36, 2, v39")
    a("v_lshlrev_b32 v48, 8, v48")
    a("v_add_u32 v52, v43, v42")
    a("v_lshl_add_u32 v48, v52, 4, v48")
    a("v_lshl_add_u32 v48, v41, 3, v48")
    a("v_xor_b32 v30, v48, v49")
    a(f"v_add_u32 v31, 65536, v30")
    a(f"v_add_u32 v32, 131072, v30")
    a("v_lshrrev_b32 v48, 1, v37")
    a("v_and_b32 v48, 7, v48")
    a("v_xor_b32 v48, v36, v48")
    a("v_lshlrev_b32 v48, 4, v48")
    a("v_lshl_add_u32 v48, v37, 7, v48")
    a("v_lshl_add_u32 v48, v51, 12, v48")
    for kc in range(4):
        a(f"v_xor_b32 v{18+kc}, {kc<<5}, v48")
    a("v_and_b32 v48, 15, v37")
    a("v_xor_b32 v48, v36, v48")
    a("v_lshlrev_b32 v48, 4, v48")
    a("v_lshl_add_u32 v48, v37, 8, v48")
    for c in range(8):
        a(f"v_xor_b32 v{22+c}, {c<<5}, v48")
    a("v_and_b32 v48, 15, v37")
    a("v_lshlrev_b32 v49, 2, v50")
    a("v_xor_b32 v48, v48, v49")
    a("v_lshlrev_b32 v48, 4, v48")
    a("v_lshl_add_u32 v48, v37, 8, v48")
    a("v_lshl_add_u32 v48, v51, 13, v48")
    a("v_lshl_add_u32 v34, v36, 3, v48")
    a("v_lshlrev_b32 v35, 4, v2")
    a("v_mov_b32 v46, v37")
    a("v_mov_b32 v45, v51")
    a("s_waitcnt lgkmcnt(0)")
    a("s_lshl_b32 s50, s46, 16")
    a("s_add_u32 s4, s4, s50"); a("s_addc_u32 s5, s5, 0")
    srd(a, 20, 4, 5, 65536)
    a("s_lshl_b32 s50, s46, 20"); a("s_lshl_b32 s51, s44, 17"); a("s_add_u32 s50, s50, s51")
    a("s_add_u32 s6, s6, s50"); a("s_addc_u32 s7, s7, 0")
    srd(a, 24, 6, 7, 131072)
    a("s_add_u32 s8, s8, s50"); a("s_addc_u32 s9, s9, 0")
    srd(a, 28, 8, 9, 131072)
    a("s_lshl_b32 s50, s48, 8")
    a("s_add_u32 s10, s10, s50"); a("s_addc_u32 s11, s11, 0")
    a(f"s_sub_u32 s51, {512*4096*2}, s50")
    srd(a, 32, 10, 11, "s51")
    a("s_lshl_b32 s50, s2, 14")
    a("s_add_u32 s12, s12, s50"); a("s_addc_u32 s13, s13, 0")
    srd(a, 36, 12, 13, 16384)
    srd(a, 40, 18, 19, WS_BYTES)
    a("s_lshl_b32 s52, s49, 10")
    a("s_lshl_b32 s53, s49, 15")
    a("s_lshl_b32 s54, s49, 11")
    a("s_lshl_b32 s55, s49, 13")
    a("s_lshl_b32 s56, s49, 14")
    a(f"s_mov_b32 s57, {f32bits(SCALE_LOG2E)}")
    rot = [0]
    NT = " nt"
    a("s_lshl_b32 s58, s47, 1")
    a("s_add_u32 s58, s58, s46")
    a("s_mov_b32 s68, 0")
    a("s_mov_b32 s69, 8192")

    def sreg_next():
        r = 60 + rot[0] % 8
        rot[0] += 1
        return r

    def q_items(s):
        buf = QS[QBUF[s]]
        items = []
        def pre():
            a(f"s_add_u32 s59, s58, {s}")
            a("s_and_b32 s59, s59, 7")
            a("s_lshl_b32 s74, s59, 19")
            a("s_add_u32 s74, s74, s53")
            a("s_lshl_b32 s75, s59, 7")
            a("s_add_u32 s75, s75, s55")
        for j in range(2):
            def f(j=j):
                if j == 0:
                    pre()
                r = sreg_next()
                a(f"s_add_u32 m0, s52, {buf + j*8192}")
                a(f"s_add_u32 s{r}, s74, {j*262144}")
                a.vm(f"buffer_load_dwordx4 v8, s[32:35], s{r} offen{NT} lds", f"Q{s}")
            items.append(f)
        def f():
            a(f"s_add_u32 m0, s52, {buf + 16384}")
            a.vm(f"buffer_load_dwordx4 v14, s[20:23], s75 offen lds", f"Q{s}")
        items.append(f)
        return items

    a("s_add_u32 s59, s49, 18"); a("s_add_u32 s70, s49, 4")
    a("s_cmp_lt_u32 s49, 2"); a("s_cselect_b32 s70, s59, s70"); a("s_lshl_b32 s70, s70, 13")
    a("s_add_u32 s59, s49, 12"); a("s_sub_u32 s71, s49, 6")
    a("s_cmp_lt_u32 s49, 6"); a("s_cselect_b32 s71, s59, s71"); a("s_lshl_b32 s71, s71, 13")
    a("s_and_b32 s72, s47, 1"); a("s_lshl_b32 s72, s72, 13"); a("s_xor_b32 s73, s72, 8192")
    a("s_add_u32 s72, s72, s52"); a("s_add_u32 s73, s73, s52")

    def k_item(kb, ws_):
        def f():
            r = sreg_next()
            a(f"s_add_u32 m0, s52, {KU[kb][ws_] * 8192}")
            a(f"s_add_u32 s{r}, s{72+kb}, {ws_ * 16384}")
            a.vm(f"buffer_load_dwordx4 v10, s[24:27], s{r} offen{NT} lds", f"K{kb}")
        return f

    def v_items(kb):
        items = []
        for half in range(2):
            for i in range(4):
                def f(half=half, i=i):
                    if i == 0:
                        a(f"s_sub_u32 s76, s{72+kb}, s52")
                        a("s_add_u32 s76, s76, s56")
                        if half:
                            a("s_add_u32 s76, s76, 4096")
                    a(f"s_add_u32 m0, s{70+kb}, {half*4096}")
                    off = f" offset:{i*1024}" if i else ""
                    a.vm(f"buffer_load_dwordx4 v9, s[28:31], s76 offen{off}{NT} lds", f"V{kb}")
                items.append(f)
        return items

    def wo_items():
        return [lambda i=i: a.vm(f"buffer_load_dwordx4 v[{56+4*i}:{59+4*i}], v16, s[36:39], s{68+i} offen{NT}", "WO")
                for i in range(2)]

    def interleave(main, side, every=1, per=1, first=0):
        side = list(side)
        for i, m in enumerate(main):
            m()
            if i >= first and (i - first) % every == 0:
                for _ in range(per):
                    if side:
                        side.pop(0)()
        for f in side:
            f()

    if PRIO:
        a("s_cmp_ge_u32 s49, 4")
        a("s_cbranch_scc0 L1_prio" if PRIO == 1 else "s_cbranch_scc1 L1_prio")
        a("s_setprio 1")
        a.label("L1_prio")
    if STAMP:
        a("s_memrealtime s[96:97]")
        a("s_waitcnt lgkmcnt(0)")
    stamp(a, "start")
    for s in range(NINIT):
        for f in q_items(s):
            f()
    late0 = []
    for s in range(NINIT, 6):
        late0 += q_items(s)
    late0 += [k_item(0, 0), k_item(0, 1)]
    if NINIT == 6:
        for f in late0:
            f()
        late0 = []

    QACC = 0
    stamp(a, "issued")
    def qreads(s):
        buf = QS[QBUF[s]]
        fb = 64 + 32 * (s & 1)
        ab = 36 + 5 * (s & 1) if False else 36
        a(f"v_add_u32 v36, {buf}, v17")
        for kc in range(4):
            a(f"v_add_u32 v{37+kc}, {buf + 16384}, v{18+kc}")
        for kc in range(4):
            a.lds(f"ds_read_b64_tr_b16 v[{fb+4*kc}:{fb+1+4*kc}], v36 offset:{kc*4096}", f"f{s}_{kc}")
            a.lds(f"ds_read_b64_tr_b16 v[{fb+2+4*kc}:{fb+3+4*kc}], v36 offset:{kc*4096+1024}", f"f{s}_{kc}")
            a.lds(f"ds_read_b128 v[{fb+16+4*kc}:{fb+19+4*kc}], v{37+kc}", f"f{s}_{kc}")
    a.wait(vm="Q0")
    a("s_barrier")
    stamp(a, "Qs0")
    qreads(0)
    for s in range(8):
        a.comment(f"---- Q stage {s}")
        fb = 64 + 32 * (s & 1)
        side = {0: late0 + q_items(6) + wo_items(), 1: q_items(7),
                2: [k_item(0, w_) for w_ in (2, 3, 4)], 3: [k_item(0, w_) for w_ in (5, 6, 7)],
                4: [k_item(1, w_) for w_ in (0, 1, 2)], 5: [k_item(1, w_) for w_ in (3, 4, 5)],
                6: [k_item(1, w_) for w_ in (6, 7)], 7: []}[s]
        a.wait(lds="all")
        def mf(kc):
            acc = f"a[{QACC}:{QACC+15}]"
            c_ = "0" if (s == 0 and kc == 0) else acc
            a(f"v_mfma_f32_32x32x16_bf16 {acc}, v[{fb+4*kc}:{fb+3+4*kc}], v[{fb+16+4*kc}:{fb+19+4*kc}], {c_}")
        mf(0)
        if s < 7:
            a.wait(vm=f"Q{s+1}")
        a("s_barrier")
        stamp(a, f"Qs{s+1}")
        if s < 7:
            qreads(s + 1)
        interleave([lambda kc=kc: mf(kc) for kc in range(1, 4)], side)
    stamp(a, "Qdone")
    for gg in range(4):
        b0 = 64 + gg * 8
        for i in range(4):
            a(f"v_accvgpr_read_b32 v{b0+i}, a{QACC+4*gg+i}")
        a(f"v_cvt_pk_bf16_f32 v{b0+4}, v{b0}, v{b0+1}")
        a(f"v_cvt_pk_bf16_f32 v{b0+5}, v{b0+2}, v{b0+3}")
        a(f"v_xor_b32 v{b0+6}, {gg<<4}, v34")
        a(f"v_add_u32 v{b0+6}, {QX}, v{b0+6}")
        a.lds(f"ds_write_b64 v{b0+6}, v[{b0+4}:{b0+5}]", "qw")
    for c in range(8):
        a(f"v_add_u32 v{36+c}, {QX}, v{22+c}")
    a.wait(lds="all", vm="K0")
    stamp(a, "Qx w")
    a("s_barrier")
    stamp(a, "Qx b2")
    QB = 16
    for t in range(2):
        for c in range(8):
            r = QB + (t * 8 + c) * 4
            a.lds(f"ds_read_b128 a[{r}:{r+3}], v{36+c} offset:{t*8192}", f"qr{t}")
        if t == 0:
            a.wait(lds="all")

    stamp(a, "Qx done")
    def S(kb, t, r):
        return 64 + (kb * 2 + t) * 16 + r
    def kfrag(kb, c):
        return f"v[{96+4*c}:{99+4*c}]" if kb == 0 else f"a[{80+4*c}:{83+4*c}]"
    def kreads(kb):
        for c in range(8):
            a(f"v_add_u32 v{36+c}, s{70+kb}, v{22+c}")
        for c in range(8):
            a.lds(f"ds_read_b128 {kfrag(kb,c)}, v{36+c}", f"k{kb}")
    a.wait(lds="all")
    kreads(0)
    for kb in range(2):
        a.wait(lds=f"k{kb}")
        main = []
        for c in range(8):
            for t in range(2):
                def f(c=c, t=t):
                    sacc = f"v[{S(kb,t,0)}:{S(kb,t,15)}]"
                    r = QB + (t * 8 + c) * 4
                    c_ = "0" if c == 0 else sacc
                    a(f"v_mfma_f32_32x32x16_bf16 {sacc}, {kfrag(kb,c)}, a[{r}:{r+3}], {c_}")
                main.append(f)
        if kb == 1: stamp(a, "S0 done")
        if kb == 0:
            def kb1():
                stamp(a, "K1 pre")
                a.wait(vm="K1")
                stamp(a, "K1 w")
                a("s_barrier")
                stamp(a, "K1 b")
                kreads(1)
            vq = v_items(0)
            interleave(main[:8], [vq.pop(0), vq.pop(0)], every=4, first=1)
            kb1()
            interleave(main[8:], [vq.pop(0), vq.pop(0)], every=4, first=1)
        else:
            interleave(main, vq, every=4, first=1)
            vq = v_items(1)

    stamp(a, "S done")
    lists = [[S(kb, t, r) for kb in range(2) for r in range(16)] for t in range(2)]
    for t in range(2):
        for ch in range(2):
            L = lists[t][16 * ch:16 * ch + 16]
            a(f"v_max3_f32 v{48+2*t+ch}, v{L[0]}, v{L[1]}, v{L[2]}")
    for i in range(3, 15, 2):
        for t in range(2):
            for ch in range(2):
                L = lists[t][16 * ch:16 * ch + 16]
                a(f"v_max3_f32 v{48+2*t+ch}, v{48+2*t+ch}, v{L[i]}, v{L[i+1]}")
        if i in (3, 11):
            vq.pop(0)()
    for t in range(2):
        L0 = lists[t][15]; L1 = lists[t][31]
        a(f"v_max3_f32 v{48+2*t}, v{48+2*t}, v{L0}, v{L1}")
        a(f"v_max_f32 v{48+2*t}, v{48+2*t}, v{49+2*t}")
    for t in range(2):
        a(f"v_mov_b32 v{49+2*t}, v{48+2*t}")
    a("v_lshlrev_b32 v36, 5, v46")
    a(f"v_add_u32 v36, {MX}, v36")
    a("v_lshl_add_u32 v37, v1, 2, v36")
    for t in range(2):
        a(f"v_permlane32_swap_b32 v{48+2*t}, v{49+2*t}")
    for t in range(2):
        a(f"v_max_f32 v{48+2*t}, v{48+2*t}, v{49+2*t}")
    for t in range(2):
        a.lds(f"ds_write_b32 v37, v{48+2*t} offset:{t*1024}", "mw")
    a("v_add_u32 v38, s54, v35")
    a(f"v_add_u32 v38, {QX}, v38")
    stamp(a, "max pre")
    a.wait(lds="all", vm="WO")
    stamp(a, "max wo")
    a("s_barrier")
    stamp(a, "max b")
    for t in range(2):
        for hh in range(2):
            r = 128 + 8 * t + 4 * hh
            a.lds(f"ds_read_b128 v[{r}:{r+3}], v36 offset:{t*1024 + hh*16}", "mr")
    for i in range(2):
        a.lds(f"ds_write_b128 v38, v[{56+4*i}:{59+4*i}] offset:{i*1024}", "wow")
    a("v_add_u32 v39, s54, v47")
    a(f"v_add_u32 v39, {QX}, v39")
    a("s_lshl_b32 s58, s49, 19")
    a("s_lshl_b32 s59, s2, 10")
    a("s_add_u32 s58, s58, s59")
    for t in range(2):
        a(f"v_mov_b32 v{50+2*t}, 0")
        a(f"v_mov_b32 v{51+2*t}, 0")
    a("v_lshl_add_u32 v42, v45, 10, v35")
    a(f"v_add_u32 v42, {QX}, v42")
    a.wait(lds="mr")
    for t in range(2):
        r = 128 + 8 * t
        a(f"v_max3_f32 v{r}, v{r}, v{r+1}, v{r+2}")
        a(f"v_max3_f32 v{r+3}, v{r+3}, v{r+4}, v{r+5}")
        a(f"v_max3_f32 v{r}, v{r}, v{r+6}, v{r+7}")
        a(f"v_max_f32 v{r}, v{r}, v{r+3}")
        a(f"v_mul_f32 v{48+t}, s57, v{r}")
    stamp(a, "max done")

    def exp_items(j):
        kb, u = j >> 1, j & 1
        it = []
        for t in range(2):
            R = [S(kb, t, 8 * u + r) for r in range(8)]
            for r in R:
                it.append(lambda t=t, r=r: a(f"v_fma_f32 v{r}, v{r}, s57, -v{48+t}"))
        for t in range(2):
            R = [S(kb, t, 8 * u + r) for r in range(8)]
            for r in R:
                it.append(lambda t=t, r=r: a(f"v_exp_f32 v{r}, v{r}"))
        for t in range(2):
            R = [S(kb, t, 8 * u + r) for r in range(8)]
            for r in R:
                it.append(lambda t=t, r=r: a(f"v_add_f32 v{50+2*t+(r&1)}, v{50+2*t+(r&1)}, v{r}"))
            for i in range(4):
                it.append(lambda t=t, i=i, R=R: a(f"v_cvt_pk_bf16_f32 v{R[i]}, v{R[2*i]}, v{R[2*i+1]}"))
        return it

    def pv_parts(j):
        kb, u = j >> 1, j & 1
        def rd(ws_):
            fb = 16 + 8 * ws_
            ad = KU[kb][ws_] * 8192 + u * 4096
            vb = 30 + (ad >> 16)
            ad &= 65535
            a.lds(f"ds_read_b64_tr_b16 a[{fb}:{fb+1}], v{vb} offset:{ad}", f"p{ws_}")
            a.lds(f"ds_read_b64_tr_b16 a[{fb+2}:{fb+3}], v{vb} offset:{ad + 2048}", f"p{ws_}")
            a.lds(f"ds_read_b128 a[{fb+4}:{fb+7}], v42 offset:{(j&1)*16384 + ws_*2048}", f"p{ws_}")
        def mf(ws_):
            a.wait(lds=f"p{ws_}")
            if ws_ + 4 < 8:
                rd(ws_ + 4)
            fb = 16 + 8 * ws_
            c_ = "0" if (j == 0 and ws_ == 0) else "a[0:15]"
            a(f"v_mfma_f32_32x32x16_bf16 a[0:15], a[{fb}:{fb+3}], a[{fb+4}:{fb+7}], {c_}")
        return rd, mf

    def p_write(j):
        kb, u = j >> 1, j & 1
        for t in range(2):
            p = S(kb, t, 8 * u)
            a.lds(f"ds_write_b128 v38, v[{p}:{p+3}] offset:{(j&1)*16384 + t*1024}", "pw")

    def l_items():
        def f():
            for t in range(2):
                a(f"v_add_f32 v{50+2*t}, v{50+2*t}, v{51+2*t}")
                a(f"v_mov_b32 v{51+2*t}, v{50+2*t}")
            a(f"v_add_u32 v37, {LX - MX}, v37")
            for t in range(2):
                a(f"v_permlane32_swap_b32 v{50+2*t}, v{51+2*t}")
            for t in range(2):
                a(f"v_add_f32 v{50+2*t}, v{50+2*t}, v{51+2*t}")
            for t in range(2):
                a.lds(f"ds_write_b32 v37, v{50+2*t} offset:{t*1024}", "lw")
        return f

    ex = exp_items(0)
    vq.pop(0)()
    for f in ex[:16]:
        f()
    vq.pop(0)()
    a.wait(lds="wow")
    for i in range(2):
        a.lds(f"ds_read_b64_tr_b16 v[{56+4*i}:{57+4*i}], v39 offset:{i*64}", "wo")
        a.lds(f"ds_read_b64_tr_b16 v[{58+4*i}:{59+4*i}], v39 offset:{i*64+512}", "wo")
    for f in ex[16:36]:
        f()
    vq.pop(0)()
    for f in ex[36:]:
        f()
    a.wait(lds="wo")
    p_write(0)
    for i in range(2):
        a(f"s_add_u32 s{68+i}, s58, {WOF_BASE + i * 262144}")
        a.vm(f"buffer_store_dwordx4 v[{56+4*i}:{59+4*i}], v35, s[40:43], s{68+i} offen sc0 sc1", "st")
    stamp(a, "exp0")
    a.wait(lds="all", vm="V0")
    a("s_barrier")
    stamp(a, "B0")
    for j in range(1, 4):
        rd, mf = pv_parts(j - 1)
        ex = exp_items(j)
        for q_ in range(4):
            rd(q_)
        for f in ex[:PV_HEAD]:
            f()
        ex = ex[PV_HEAD:]
        done = False
        for ws_ in range(8):
            mf(ws_)
            if vq and ws_ % 3 == 0:
                vq.pop(0)()
            for _ in range(PV_PER):
                if ex:
                    ex.pop(0)()
            if not ex and not done:
                done = True
                p_write(j)
                if j == 3:
                    l_items()()
        assert done
        if j == 1: stamp(a, "pv0exp1")
        stamp(a, f"e{j} pre")
        a.wait(lds="all", vm=("V1" if j == 2 else None))
        stamp(a, f"e{j} w")
        a("s_barrier")
        stamp(a, f"e{j} b")
    stamp(a, "exp done")
    a(f"v_add_u32 v36, {LX - MX}, v36")
    a("v_lshl_add_u32 v36, v45, 10, v36")
    for hh in range(2):
        a.lds(f"ds_read_b128 v[{128+4*hh}:{131+4*hh}], v36 offset:{hh*16}", "lr")
    rd, mf = pv_parts(3)
    for q_ in range(4):
        rd(q_)
    a("s_lshl_b32 s58, s46, 19"); a("s_lshl_b32 s59, s48, 13"); a("s_add_u32 s58, s58, s59")
    a("s_and_b32 s59, s49, 3"); a("s_lshl_b32 s59, s59, 11"); a("s_add_u32 s58, s58, s59")
    a("s_lshr_b32 s59, s49, 2"); a("s_lshl_b32 s59, s59, 18"); a("s_add_u32 s58, s58, s59")
    def lfin():
        for i in range(4):
            a(f"v_add_f32 v{128+i}, v{128+i}, v{132+i}")
        a("v_add_f32 v128, v128, v129")
        a("v_add_f32 v130, v130, v131")
        a("v_add_f32 v128, v128, v130")
        a("v_rcp_f32 v128, v128")
    rd, mf = pv_parts(3)
    for ws_ in range(8):
        mf(ws_)
        if ws_ == 1:
            lfin()
    stamp(a, "PV done")
    for r in range(16):
        a(f"v_accvgpr_read_b32 v{64+r}, a{r}")
    for r in range(16):
        a(f"v_mul_f32 v{64+r}, v{64+r}, v128")
    for i in range(8):
        a(f"v_cvt_pk_bf16_f32 v{80+i}, v{64+2*i}, v{65+2*i}")
    for e in range(2):
        r = 80 + 4 * e
        off = " offset:1024" if e else ""
        a.vm(f"buffer_store_dwordx4 v[{r}:{r+3}], v35, s[40:43], s58 offen{off} sc0 sc1", "st")
    a.wait(vm="all")
    stamp(a, "end")
    if STAMP:
        a("s_memrealtime s[98:99]")
        a("s_waitcnt lgkmcnt(0)")
        a("s_sub_u32 s96, s98, s96")
    dump_stamps(a)
    a.label("L1_done")
    a("s_endpgm")


def gen_k2(a):
    a.raw(".globl oproj_kernel\n.p2align 8\n.type oproj_kernel,@function")
    a.label("oproj_kernel")
    a("s_cmp_ge_u32 s2, 256")
    a("s_cbranch_scc1 L2_done")
    a("s_load_dwordx2 s[14:15], s[0:1], 40")
    a("s_load_dwordx2 s[18:19], s[0:1], 56")
    a("s_and_b32 s44, s2, 7")
    a("s_lshr_b32 s45, s2, 3")
    lm = K2MAP; ln = 5 - K2MAP
    mg = 4 - lm
    a(f"s_and_b32 s46, s44, {(1<<mg)-1}"); a(f"s_lshl_b32 s46, s46, {lm}"); a(f"s_and_b32 s47, s45, {(1<<lm)-1}"); a("s_add_u32 s46, s46, s47")
    a(f"s_lshr_b32 s48, s44, {mg}"); a(f"s_lshl_b32 s48, s48, {ln}"); a(f"s_lshr_b32 s47, s45, {lm}"); a("s_add_u32 s48, s48, s47")
    a("v_lshrrev_b32 v1, 6, v0")
    a("v_and_b32 v2, 63, v0")
    a("v_lshlrev_b32 v3, 4, v2")
    a("v_lshl_add_u32 v4, v1, 16, v3")
    a("s_waitcnt lgkmcnt(0)")
    srd(a, 40, 18, 19, WS_BYTES)
    srd(a, 36, 14, 15, 8 * 64 * 512 * 2)
    a("s_lshl_b32 s50, s48, 18"); a(f"s_add_u32 s50, s50, {WOF_BASE}")
    a("s_lshl_b32 s51, s46, 18")
    NB = 8
    NSET = 4
    def regA(set_, i): return set_ * 64 + i * 8
    a("s_and_b32 s54, s45, 3"); a("s_lshl_b32 s54, s54, 1"); a("s_lshr_b32 s55, s45, 2"); a("s_add_u32 s54, s54, s55")
    if K2NOROT:
        a("s_mov_b32 s54, 0")
    def issue(bt):
        set_ = bt % NSET
        a(f"s_add_u32 s56, s54, {bt}")
        a("s_and_b32 s56, s56, 7")
        a("s_lshl_b32 s56, s56, 13")
        a("s_add_u32 s57, s56, s50")
        a("s_add_u32 s58, s56, s51")
        for half in range(NB // 4):
            a(f"s_add_u32 s{60+half*2}, s57, {half*4096}")
            a(f"s_add_u32 s{61+half*2}, s58, {half*4096}")
            for i in range(4):
                r = regA(set_, half * 4 + i)
                off = f" offset:{i*1024}" if i else ""
                a.vm(f"buffer_load_dwordx4 a[{r}:{r+3}], v4, s[40:43], s{60+half*2} offen{off}", f"b{bt}_{half*4+i}")
                a.vm(f"buffer_load_dwordx4 a[{r+4}:{r+7}], v4, s[40:43], s{61+half*2} offen{off}", f"b{bt}_{half*4+i}")
    nbt = 64 // NB
    for bt in range(3):
        issue(bt)
    for bt in range(nbt):
        set_ = bt % NSET
        for i in range(NB):
            a.wait(vm=f"b{bt}_{i}")
            if i == 0 and bt + 3 < nbt:
                issue(bt + 3)
            r = regA(set_, i)
            c_ = "0" if (bt == 0 and i == 0) else "v[16:31]"
            a(f"v_mfma_f32_32x32x16_bf16 v[16:31], a[{r}:{r+3}], a[{r+4}:{r+7}], {c_}")
    a("v_lshl_add_u32 v5, v1, 12, v3")
    for g in range(4):
        a.lds(f"ds_write_b128 v5, v[{16+4*g}:{19+4*g}] offset:{g*1024}", "w")
    a.wait(lds="all")
    a("s_barrier")
    a("v_lshl_add_u32 v5, v1, 10, v3")
    for ws_ in range(4):
        a.lds(f"ds_read_b128 v[{32+4*ws_}:{35+4*ws_}], v5 offset:{ws_*4096}", "r")
    a("v_and_b32 v6, 31, v2")
    a("v_lshrrev_b32 v7, 5, v2")
    a("v_lshlrev_b32 v6, 10, v6")
    a("v_lshl_add_u32 v6, v7, 3, v6")
    a("v_lshl_add_u32 v6, v1, 4, v6")
    a("s_lshl_b32 s52, s46, 15"); a("s_lshl_b32 s53, s48, 6"); a("s_add_u32 s52, s52, s53")
    a.wait(lds="all")
    for i in range(4):
        a(f"v_add_f32 v{32+i}, v{32+i}, v{36+i}")
        a(f"v_add_f32 v{40+i}, v{40+i}, v{44+i}")
    for i in range(4):
        a(f"v_add_f32 v{32+i}, v{32+i}, v{40+i}")
    a("v_cvt_pk_bf16_f32 v48, v32, v33")
    a("v_cvt_pk_bf16_f32 v49, v34, v35")
    a.vm("buffer_store_dwordx2 v[48:49], v6, s[36:39], s52 offen", "st")
    a.label("L2_done")
    a("s_endpgm")


def gen_k2b(a):
    a.raw(".globl oproj_kernel\n.p2align 8\n.type oproj_kernel,@function")
    a.label("oproj_kernel")
    a("s_cmp_ge_u32 s2, 256")
    a("s_cbranch_scc1 L2_done")
    a("s_load_dwordx2 s[14:15], s[0:1], 40")
    a("s_load_dwordx2 s[18:19], s[0:1], 56")
    a("s_and_b32 s44, s2, 7")
    a("s_lshr_b32 s45, s2, 3")
    a("s_and_b32 s46, s44, 3"); a("s_lshl_b32 s46, s46, 2"); a("s_and_b32 s47, s45, 3"); a("s_add_u32 s46, s46, s47")
    a("s_lshr_b32 s48, s44, 2"); a("s_lshl_b32 s48, s48, 3"); a("s_lshr_b32 s47, s45, 2"); a("s_add_u32 s48, s48, s47")
    a("v_lshrrev_b32 v1, 6, v0")
    a("v_and_b32 v2, 63, v0")
    a("v_lshlrev_b32 v3, 4, v2")
    a("v_lshl_add_u32 v4, v1, 15, v3")
    a("s_lshl_b32 s50, s48, 18"); a(f"s_add_u32 s50, s50, {WOF_BASE}")
    a("s_lshl_b32 s51, s46, 18")
    a("s_waitcnt lgkmcnt(0)")
    srd(a, 40, 18, 19, WS_BYTES)
    NB = 8
    NSET = 3
    def regA(set_, i): return set_ * 64 + i * 8
    def issue(bt):
        set_ = bt % NSET
        for half in range(NB // 4):
            a(f"s_add_u32 s{60+half*2}, s50, {(bt*NB+half*4)*1024}")
            a(f"s_add_u32 s{61+half*2}, s51, {(bt*NB+half*4)*1024}")
            for i in range(4):
                r = regA(set_, half * 4 + i)
                off = f" offset:{i*1024}" if i else ""
                a.vm(f"buffer_load_dwordx4 a[{r}:{r+3}], v4, s[40:43], s{60+half*2} offen{off}", f"b{bt}_{half*4+i}")
                a.vm(f"buffer_load_dwordx4 a[{r+4}:{r+7}], v4, s[40:43], s{61+half*2} offen{off}", f"b{bt}_{half*4+i}")
    nbt = 32 // NB
    for bt in range(3):
        issue(bt)
    srd(a, 36, 14, 15, 8 * 64 * 512 * 2)
    a("v_and_b32 v6, 31, v2")
    a("v_lshrrev_b32 v7, 5, v2")
    a("v_lshlrev_b32 v6, 10, v6")
    a("v_lshl_add_u32 v6, v7, 3, v6")
    a("v_lshrrev_b32 v7, 1, v1")
    a("v_lshl_add_u32 v6, v7, 4, v6")
    a("v_and_b32 v7, 1, v1")
    a("v_lshl_add_u32 v6, v7, 2, v6")
    a("s_lshl_b32 s52, s46, 15"); a("s_lshl_b32 s53, s48, 6"); a("s_add_u32 s52, s52, s53")
    a("v_lshlrev_b32 v8, 3, v2")
    a("v_lshl_add_u32 v5, v1, 12, v8")
    a("v_lshl_add_u32 v9, v1, 9, v8")
    for bt in range(nbt):
        set_ = bt % NSET
        for i in range(NB):
            a.wait(vm=f"b{bt}_{i}")
            r = regA(set_, i)
            c_ = "0" if (bt == 0 and i == 0) else "v[16:31]"
            a(f"v_mfma_f32_32x32x16_bf16 v[16:31], a[{r}:{r+3}], a[{r+4}:{r+7}], {c_}")
        if bt + 3 < nbt:
            issue(bt + 3)
    for p in range(8):
        a.lds(f"ds_write_b64 v5, v[{16+2*p}:{17+2*p}] offset:{p*512}", "w")
    a.wait(lds="all")
    a("s_barrier")
    for ws_ in range(8):
        a.lds(f"ds_read_b64 v[{32+2*ws_}:{33+2*ws_}], v9 offset:{ws_*4096}", "r")
    a.wait(lds="all")
    for i in range(2):
        a(f"v_add_f32 v{32+i}, v{32+i}, v{34+i}")
        a(f"v_add_f32 v{36+i}, v{36+i}, v{38+i}")
        a(f"v_add_f32 v{40+i}, v{40+i}, v{42+i}")
        a(f"v_add_f32 v{44+i}, v{44+i}, v{46+i}")
    for i in range(2):
        a(f"v_add_f32 v{32+i}, v{32+i}, v{36+i}")
        a(f"v_add_f32 v{40+i}, v{40+i}, v{44+i}")
    for i in range(2):
        a(f"v_add_f32 v{32+i}, v{32+i}, v{40+i}")
    a("v_cvt_pk_bf16_f32 v48, v32, v33")
    a.vm("buffer_store_dword v48, v6, s[36:39], s52 offen", "st")
    a.label("L2_done")
    a("s_endpgm")


def desc(name, vgpr, accum, sgpr=102):
    return f""".amdhsa_kernel {name}
  .amdhsa_next_free_vgpr {vgpr}
  .amdhsa_next_free_sgpr {sgpr}
  .amdhsa_accum_offset {accum}
  .amdhsa_group_segment_fixed_size 0
  .amdhsa_kernarg_size 64
  .amdhsa_user_sgpr_count 2
  .amdhsa_user_sgpr_kernarg_segment_ptr 1
  .amdhsa_system_sgpr_workgroup_id_x 1
.end_amdhsa_kernel
"""


def main():
    hdr = open("standalone__gqa_block_cached__near_ridge.s.ref").read().split("\n")
    hdr = [l for l in hdr if l.startswith(";") and "launch" not in l.lower()]
    txt = "\n".join(hdr) + "\n"
    txt += "; @launch kernel=attn_kernel grid=(256,1,1) block=(512,1,1) lds=163840\n"
    K2B = "--k2a" not in sys.argv
    if K2B:
        txt += "; @launch kernel=oproj_kernel grid=(256,1,1) block=(512,1,1) lds=32768\n"
    else:
        txt += "; @launch kernel=oproj_kernel grid=(256,1,1) block=(256,1,1) lds=16384\n"
    txt += '.amdgcn_target "amdgcn-amd-amdhsa--gfx950"\n.text\n'
    a1 = Asm(); gen_k1(a1)
    a2 = Asm(); (gen_k2b if K2B else gen_k2)(a2)
    txt += a1.text() + a2.text()
    txt += '.section .rodata,"a"\n.p2align 6\n' + desc("attn_kernel", 256, 144)
    txt += ".p2align 6\n" + (desc("oproj_kernel", 64 + 192, 64) if K2B else desc("oproj_kernel", 64 + 256, 64))
    open(OUT, "w").write(txt)
    print("k1 lines", len(a1.lines), "nops", a1.nops, " k2 lines", len(a2.lines), "nops", a2.nops)


main()
```

```python
import sys, math, struct
from asmlib import Asm

OUT = sys.argv[1] if len(sys.argv) > 1 and not sys.argv[1].startswith("--") else "standalone__gqa_block_cached__near_ridge.s"

STAMP = "--stamp" in sys.argv
PREFETCH = "--nopf" not in sys.argv
K2NOROT = True
NINIT = 6
for _a in sys.argv:
    if _a.startswith("--ninit="): NINIT = int(_a[8:])
PV_HEAD = 20
PV_PER = 6
PRIO = 0
for _a in sys.argv:
    if _a.startswith("--pvhead="): PV_HEAD = int(_a[9:])
    if _a.startswith("--pvper="): PV_PER = int(_a[8:])
    if _a.startswith("--prio="): PRIO = int(_a[7:])
K2MAP = 2
for _a in sys.argv:
    if _a.startswith("--k2map="): K2MAP = int(_a[8:])
WOF_BASE = 4 << 20
WS_BYTES = 8 << 20

def f32bits(x):
    return struct.unpack("<I", struct.pack("<f", x))[0]

SCALE_LOG2E = (128 ** -0.5) * math.log2(math.e)

QS = [i * 24576 for i in range(6)]
QBUF = [0, 1, 2, 3, 4, 5, 0, 1]
KU = [[18, 19, 6, 7, 8, 9, 10, 11], [12, 13, 14, 15, 16, 17, 0, 1]]
QX = 16384
MX = QX + 16384
LX = 18 * 8192


def slot_base(kb):
    return (KV_EARLY + kb * 8192) if kb < 2 else (KV_LATE + (kb - 2) * 8192)


def srd(a, d, lo, hi, nbytes):
    a(f"s_mov_b32 s{d}, s{lo}")
    a(f"s_mov_b32 s{d+1}, s{hi}")
    if isinstance(nbytes, int):
        a(f"s_mov_b32 s{d+2}, {nbytes}")
    else:
        a(f"s_mov_b32 s{d+2}, s{nbytes[1:]}")
    a(f"s_mov_b32 s{d+3}, 0x00020000")


_stamps = []
STAMPSET = None
for _arg in sys.argv:
    if _arg.startswith("--stamps="):
        STAMPSET = _arg[9:].split(",")
def stamp(a, name):
    if not STAMP or (STAMPSET is not None and name not in STAMPSET):
        return
    i = len(_stamps)
    _stamps.append(name)
    a.wait(lds="all")
    a("s_memtime s[78:79]")
    a("s_waitcnt lgkmcnt(0)")
    a(f"s_mov_b32 s{80+i}, s78")

def dump_stamps(a):
    if not STAMP:
        return
    a("s_cmp_lg_u32 s2, 37")
    a("s_cbranch_scc1 L1_nostamp")
    a("s_and_b32 s59, s49, 3")
    a("s_cmp_lg_u32 s59, 0")
    a("s_cbranch_scc1 L1_nostamp")
    srd(a, 20, 16, 17, 256)
    a("s_lshl_b32 s59, s49, 5")
    for i in range(len(_stamps)):
        a(f"v_mov_b32 v3, s{80+i}")
        a(f"v_mov_b32 v4, {4*i}")
        a(f"buffer_store_dword v3, v4, s[20:23], s59 offen")
        a("s_waitcnt vmcnt(0)")
    a.label("L1_nostamp")
    print("stamps:", _stamps)

def gen_k1(a):
    a.raw(".globl attn_kernel\n.p2align 8\n.type attn_kernel,@function")
    a.label("attn_kernel")
    a("s_cmp_ge_u32 s2, 256")
    a("s_cbranch_scc1 L1_done")
    a("s_load_dwordx16 s[4:19], s[0:1], 0")
    a("s_and_b32 s44, s2, 7")
    a("s_lshr_b32 s45, s2, 3")
    a("s_lshr_b32 s46, s45, 2")
    a("s_and_b32 s47, s45, 3")
    a("s_lshl_b32 s48, s44, 2")
    a("s_add_u32 s48, s48, s47")
    a("v_lshrrev_b32 v1, 6, v0")
    a("v_and_b32 v2, 63, v0")
    a("v_readfirstlane_b32 s49, v1")
    a("v_and_b32 v50, 3, v1")
    a("v_lshrrev_b32 v51, 2, v1")
    a("v_lshrrev_b32 v3, 4, v2")
    a("v_and_b32 v4, 15, v2")
    a("v_lshlrev_b32 v5, 2, v3")
    a("v_xor_b32 v5, v4, v5")
    a("v_lshlrev_b32 v5, 4, v5")
    a("v_lshl_add_u32 v8, v3, 13, v5")
    a("v_lshl_add_u32 v9, v3, 8, v5")
    a("v_lshl_add_u32 v6, v50, 2, v3")
    a("v_xor_b32 v6, v4, v6")
    a("v_lshlrev_b32 v6, 4, v6")
    a("v_lshl_add_u32 v10, v3, 8, v6")
    a("v_lshrrev_b32 v6, 3, v2")
    a("v_and_b32 v7, 7, v2")
    a("v_and_b32 v36, 1, v1")
    a("v_lshl_add_u32 v36, v36, 2, v3")
    a("v_and_b32 v36, 7, v36")
    a("v_xor_b32 v36, v7, v36")
    a("v_lshlrev_b32 v36, 4, v36")
    a("v_lshl_add_u32 v14, v6, 10, v36")
    a("v_lshlrev_b32 v16, 4, v7")
    a("v_lshl_add_u32 v16, v6, 10, v16")
    a("v_lshl_add_u32 v16, v1, 7, v16")
    a("v_lshrrev_b32 v36, 5, v2")
    a("v_and_b32 v37, 31, v2")
    a("v_and_b32 v38, 1, v3")
    a("v_lshrrev_b32 v39, 2, v2")
    a("v_and_b32 v39, 3, v39")
    a("v_and_b32 v40, 3, v2")
    a("v_lshrrev_b32 v41, 1, v40")
    a("v_and_b32 v42, 1, v40")
    a("v_lshlrev_b32 v43, 2, v39")
    a("v_lshl_add_u32 v43, v38, 1, v43")
    a("v_lshl_add_u32 v48, v36, 3, v39")
    a("v_lshlrev_b32 v47, 7, v48")
    a("v_lshl_add_u32 v47, v38, 5, v47")
    a("v_lshl_add_u32 v47, v40, 3, v47")
    a("v_lshlrev_b32 v48, 8, v48")
    a("v_add_u32 v49, v43, v41")
    a("v_lshl_add_u32 v48, v49, 4, v48")
    a("v_lshl_add_u32 v48, v42, 3, v48")
    a("v_lshlrev_b32 v49, 6, v50")
    a("v_xor_b32 v17, v48, v49")
    a("v_lshl_add_u32 v48, v36, 2, v39")
    a("v_lshlrev_b32 v48, 8, v48")
    a("v_add_u32 v52, v43, v42")
    a("v_lshl_add_u32 v48, v52, 4, v48")
    a("v_lshl_add_u32 v48, v41, 3, v48")
    a("v_xor_b32 v30, v48, v49")
    a(f"v_add_u32 v31, 65536, v30")
    a(f"v_add_u32 v32, 131072, v30")
    a("v_lshrrev_b32 v48, 1, v37")
    a("v_and_b32 v48, 7, v48")
    a("v_xor_b32 v48, v36, v48")
    a("v_lshlrev_b32 v48, 4, v48")
    a("v_lshl_add_u32 v48, v37, 7, v48")
    a("v_lshl_add_u32 v48, v51, 12, v48")
    for kc in range(4):
        a(f"v_xor_b32 v{18+kc}, {kc<<5}, v48")
    a("v_and_b32 v48, 15, v37")
    a("v_xor_b32 v48, v36, v48")
    a("v_lshlrev_b32 v48, 4, v48")
    a("v_lshl_add_u32 v48, v37, 8, v48")
    for c in range(8):
        a(f"v_xor_b32 v{22+c}, {c<<5}, v48")
    a("v_and_b32 v48, 15, v37")
    a("v_lshlrev_b32 v49, 2, v50")
    a("v_xor_b32 v48, v48, v49")
    a("v_lshlrev_b32 v48, 4, v48")
    a("v_lshl_add_u32 v48, v37, 8, v48")
    a("v_lshl_add_u32 v48, v51, 13, v48")
    a("v_lshl_add_u32 v34, v36, 3, v48")
    a("v_lshlrev_b32 v35, 4, v2")
    a("v_mov_b32 v46, v37")
    a("v_mov_b32 v45, v51")
    a("s_waitcnt lgkmcnt(0)")
    a("s_lshl_b32 s50, s46, 16")
    a("s_add_u32 s4, s4, s50"); a("s_addc_u32 s5, s5, 0")
    srd(a, 20, 4, 5, 65536)
    a("s_lshl_b32 s50, s46, 20"); a("s_lshl_b32 s51, s44, 17"); a("s_add_u32 s50, s50, s51")
    a("s_add_u32 s6, s6, s50"); a("s_addc_u32 s7, s7, 0")
    srd(a, 24, 6, 7, 131072)
    a("s_add_u32 s8, s8, s50"); a("s_addc_u32 s9, s9, 0")
    srd(a, 28, 8, 9, 131072)
    a("s_lshl_b32 s50, s48, 8")
    a("s_add_u32 s10, s10, s50"); a("s_addc_u32 s11, s11, 0")
    a(f"s_sub_u32 s51, {512*4096*2}, s50")
    srd(a, 32, 10, 11, "s51")
    a("s_lshl_b32 s50, s2, 14")
    a("s_add_u32 s12, s12, s50"); a("s_addc_u32 s13, s13, 0")
    srd(a, 36, 12, 13, 16384)
    srd(a, 40, 18, 19, WS_BYTES)
    a("s_lshl_b32 s52, s49, 10")
    a("s_lshl_b32 s53, s49, 15")
    a("s_lshl_b32 s54, s49, 11")
    a("s_lshl_b32 s55, s49, 13")
    a("s_lshl_b32 s56, s49, 14")
    a(f"s_mov_b32 s57, {f32bits(SCALE_LOG2E)}")
    rot = [0]
    NT = ""
    a("s_lshl_b32 s58, s47, 1")
    a("s_add_u32 s58, s58, s46")
    if "--norot" in sys.argv:
        a("s_mov_b32 s58, 0")
    a("s_mov_b32 s68, 0")
    a("s_mov_b32 s69, 8192")

    def sreg_next():
        r = 60 + rot[0] % 8
        rot[0] += 1
        return r

    def q_items(s):
        buf = QS[QBUF[s]]
        items = []
        def pre():
            a(f"s_add_u32 s59, s58, {s}")
            a("s_and_b32 s59, s59, 7")
            a("s_lshl_b32 s74, s59, 19")
            a("s_add_u32 s74, s74, s53")
            a("s_lshl_b32 s75, s59, 7")
            a("s_add_u32 s75, s75, s55")
        for j in range(2):
            def f(j=j):
                if j == 0:
                    pre()
                r = sreg_next()
                a(f"s_add_u32 m0, s52, {buf + j*8192}")
                a(f"s_add_u32 s{r}, s74, {j*262144}")
                a.vm(f"buffer_load_dwordx4 v8, s[32:35], s{r} offen{NT} lds", f"Q{s}")
            items.append(f)
        def f():
            a(f"s_add_u32 m0, s52, {buf + 16384}")
            a.vm(f"buffer_load_dwordx4 v14, s[20:23], s75 offen lds", f"Q{s}")
        items.append(f)
        return items

    a("s_add_u32 s59, s49, 18"); a("s_add_u32 s70, s49, 4")
    a("s_cmp_lt_u32 s49, 2"); a("s_cselect_b32 s70, s59, s70"); a("s_lshl_b32 s70, s70, 13")
    a("s_add_u32 s59, s49, 12"); a("s_sub_u32 s71, s49, 6")
    a("s_cmp_lt_u32 s49, 6"); a("s_cselect_b32 s71, s59, s71"); a("s_lshl_b32 s71, s71, 13")
    a("s_and_b32 s72, s47, 1")
    if "--norot" in sys.argv:
        a("s_mov_b32 s72, 0")
    a("s_lshl_b32 s72, s72, 13"); a("s_xor_b32 s73, s72, 8192")
    a("s_add_u32 s72, s72, s52"); a("s_add_u32 s73, s73, s52")

    def k_item(kb, ws_):
        def f():
            r = sreg_next()
            a(f"s_add_u32 m0, s52, {KU[kb][ws_] * 8192}")
            a(f"s_add_u32 s{r}, s{72+kb}, {ws_ * 16384}")
            a.vm(f"buffer_load_dwordx4 v10, s[24:27], s{r} offen{NT} lds", f"K{kb}")
        return f

    def v_items(kb):
        items = []
        for half in range(2):
            for i in range(4):
                def f(half=half, i=i):
                    if i == 0:
                        a(f"s_sub_u32 s76, s{72+kb}, s52")
                        a("s_add_u32 s76, s76, s56")
                        if half:
                            a("s_add_u32 s76, s76, 4096")
                    a(f"s_add_u32 m0, s{70+kb}, {half*4096}")
                    off = f" offset:{i*1024}" if i else ""
                    a.vm(f"buffer_load_dwordx4 v9, s[28:31], s76 offen{off}{NT} lds", f"V{kb}")
                items.append(f)
        return items

    def wo_items():
        return [lambda i=i: a.vm(f"buffer_load_dwordx4 v[{56+4*i}:{59+4*i}], v16, s[36:39], s{68+i} offen{NT}", "WO")
                for i in range(2)]

    def interleave(main, side, every=1, per=1, first=0):
        side = list(side)
        for i, m in enumerate(main):
            m()
            if i >= first and (i - first) % every == 0:
                for _ in range(per):
                    if side:
                        side.pop(0)()
        for f in side:
            f()

    if PRIO:
        a("s_cmp_ge_u32 s49, 4")
        a("s_cbranch_scc0 L1_prio" if PRIO == 1 else "s_cbranch_scc1 L1_prio")
        a("s_setprio 1")
        a.label("L1_prio")
    if STAMP:
        a("s_memrealtime s[96:97]")
        a("s_waitcnt lgkmcnt(0)")
    stamp(a, "start")
    for s in range(NINIT):
        for f in q_items(s):
            f()
    late0 = []
    for s in range(NINIT, 6):
        late0 += q_items(s)
    late0 += [k_item(0, 0), k_item(0, 1)]
    if NINIT == 6:
        for f in late0:
            f()
        late0 = []

    QACC = 0
    stamp(a, "issued")
    def qreads(s):
        buf = QS[QBUF[s]]
        fb = 64 + 32 * (s & 1)
        ab = 36 + 5 * (s & 1) if False else 36
        a(f"v_add_u32 v36, {buf}, v17")
        for kc in range(4):
            a(f"v_add_u32 v{37+kc}, {buf + 16384}, v{18+kc}")
        for kc in range(4):
            a.lds(f"ds_read_b64_tr_b16 v[{fb+4*kc}:{fb+1+4*kc}], v36 offset:{kc*4096}", f"f{s}_{kc}")
            a.lds(f"ds_read_b64_tr_b16 v[{fb+2+4*kc}:{fb+3+4*kc}], v36 offset:{kc*4096+1024}", f"f{s}_{kc}")
            a.lds(f"ds_read_b128 v[{fb+16+4*kc}:{fb+19+4*kc}], v{37+kc}", f"f{s}_{kc}")
    a.wait(vm="Q0")
    a("s_barrier")
    stamp(a, "Qs0")
    qreads(0)
    for s in range(8):
        a.comment(f"---- Q stage {s}")
        fb = 64 + 32 * (s & 1)
        side = {0: late0 + q_items(6) + wo_items(), 1: q_items(7),
                2: [k_item(0, w_) for w_ in (2, 3, 4)], 3: [k_item(0, w_) for w_ in (5, 6, 7)],
                4: [k_item(1, w_) for w_ in (0, 1, 2)], 5: [k_item(1, w_) for w_ in (3, 4, 5)],
                6: [k_item(1, w_) for w_ in (6, 7)], 7: []}[s]
        a.wait(lds="all")
        def mf(kc):
            acc = f"a[{QACC}:{QACC+15}]"
            c_ = "0" if (s == 0 and kc == 0) else acc
            a(f"v_mfma_f32_32x32x16_bf16 {acc}, v[{fb+4*kc}:{fb+3+4*kc}], v[{fb+16+4*kc}:{fb+19+4*kc}], {c_}")
        mf(0)
        if s < 7:
            a.wait(vm=f"Q{s+1}")
        a("s_barrier")
        stamp(a, f"Qs{s+1}")
        if s < 7:
            qreads(s + 1)
        interleave([lambda kc=kc: mf(kc) for kc in range(1, 4)], side)
    stamp(a, "Qdone")
    for gg in range(4):
        b0 = 64 + gg * 8
        for i in range(4):
            a(f"v_accvgpr_read_b32 v{b0+i}, a{QACC+4*gg+i}")
        a(f"v_cvt_pk_bf16_f32 v{b0+4}, v{b0}, v{b0+1}")
        a(f"v_cvt_pk_bf16_f32 v{b0+5}, v{b0+2}, v{b0+3}")
        a(f"v_xor_b32 v{b0+6}, {gg<<4}, v34")
        a(f"v_add_u32 v{b0+6}, {QX}, v{b0+6}")
        a.lds(f"ds_write_b64 v{b0+6}, v[{b0+4}:{b0+5}]", "qw")
    for c in range(8):
        a(f"v_add_u32 v{36+c}, {QX}, v{22+c}")
    a.wait(lds="all", vm="K0")
    stamp(a, "Qx w")
    a("s_barrier")
    stamp(a, "Qx b2")
    QB = 16
    for t in range(2):
        for c in range(8):
            r = QB + (t * 8 + c) * 4
            a.lds(f"ds_read_b128 a[{r}:{r+3}], v{36+c} offset:{t*8192}", f"qr{t}")
        if t == 0:
            a.wait(lds="all")

    stamp(a, "Qx done")
    def S(kb, t, r):
        return 64 + (kb * 2 + t) * 16 + r
    def kfrag(kb, c):
        return f"v[{96+4*c}:{99+4*c}]" if kb == 0 else f"a[{80+4*c}:{83+4*c}]"
    def kreads(kb):
        for c in range(8):
            a(f"v_add_u32 v{36+c}, s{70+kb}, v{22+c}")
        for c in range(8):
            a.lds(f"ds_read_b128 {kfrag(kb,c)}, v{36+c}", f"k{kb}")
    a.wait(lds="all")
    kreads(0)
    for kb in range(2):
        a.wait(lds=f"k{kb}")
        main = []
        for c in range(8):
            for t in range(2):
                def f(c=c, t=t):
                    sacc = f"v[{S(kb,t,0)}:{S(kb,t,15)}]"
                    r = QB + (t * 8 + c) * 4
                    c_ = "0" if c == 0 else sacc
                    a(f"v_mfma_f32_32x32x16_bf16 {sacc}, {kfrag(kb,c)}, a[{r}:{r+3}], {c_}")
                main.append(f)
        if kb == 1: stamp(a, "S0 done")
        if kb == 0:
            def kb1():
                stamp(a, "K1 pre")
                a.wait(vm="K1")
                stamp(a, "K1 w")
                a("s_barrier")
                stamp(a, "K1 b")
                kreads(1)
            vq = v_items(0)
            interleave(main[:8], [vq.pop(0), vq.pop(0)], every=4, first=1)
            kb1()
            interleave(main[8:], [vq.pop(0), vq.pop(0)], every=4, first=1)
        else:
            interleave(main, vq, every=4, first=1)
            vq = v_items(1)

    stamp(a, "S done")
    lists = [[S(kb, t, r) for kb in range(2) for r in range(16)] for t in range(2)]
    for t in range(2):
        for ch in range(2):
            L = lists[t][16 * ch:16 * ch + 16]
            a(f"v_max3_f32 v{48+2*t+ch}, v{L[0]}, v{L[1]}, v{L[2]}")
    for i in range(3, 15, 2):
        for t in range(2):
            for ch in range(2):
                L = lists[t][16 * ch:16 * ch + 16]
                a(f"v_max3_f32 v{48+2*t+ch}, v{48+2*t+ch}, v{L[i]}, v{L[i+1]}")
        if i in (3, 11):
            vq.pop(0)()
    for t in range(2):
        L0 = lists[t][15]; L1 = lists[t][31]
        a(f"v_max3_f32 v{48+2*t}, v{48+2*t}, v{L0}, v{L1}")
        a(f"v_max_f32 v{48+2*t}, v{48+2*t}, v{49+2*t}")
    for t in range(2):
        a(f"v_mov_b32 v{49+2*t}, v{48+2*t}")
    a("v_lshlrev_b32 v36, 5, v46")
    a(f"v_add_u32 v36, {MX}, v36")
    a("v_lshl_add_u32 v37, v1, 2, v36")
    for t in range(2):
        a(f"v_permlane32_swap_b32 v{48+2*t}, v{49+2*t}")
    for t in range(2):
        a(f"v_max_f32 v{48+2*t}, v{48+2*t}, v{49+2*t}")
    for t in range(2):
        a.lds(f"ds_write_b32 v37, v{48+2*t} offset:{t*1024}", "mw")
    a("v_add_u32 v38, s54, v35")
    a(f"v_add_u32 v38, {QX}, v38")
    stamp(a, "max pre")
    a.wait(lds="all", vm="WO")
    stamp(a, "max wo")
    a("s_barrier")
    stamp(a, "max b")
    for t in range(2):
        for hh in range(2):
            r = 128 + 8 * t + 4 * hh
            a.lds(f"ds_read_b128 v[{r}:{r+3}], v36 offset:{t*1024 + hh*16}", "mr")
    for i in range(2):
        a.lds(f"ds_write_b128 v38, v[{56+4*i}:{59+4*i}] offset:{i*1024}", "wow")
    a("v_add_u32 v39, s54, v47")
    a(f"v_add_u32 v39, {QX}, v39")
    a("s_lshl_b32 s58, s49, 19")
    a("s_lshl_b32 s59, s2, 10")
    a("s_add_u32 s58, s58, s59")
    for t in range(2):
        a(f"v_mov_b32 v{50+2*t}, 0")
        a(f"v_mov_b32 v{51+2*t}, 0")
    a("v_lshl_add_u32 v42, v45, 10, v35")
    a(f"v_add_u32 v42, {QX}, v42")
    a.wait(lds="mr")
    for t in range(2):
        r = 128 + 8 * t
        a(f"v_max3_f32 v{r}, v{r}, v{r+1}, v{r+2}")
        a(f"v_max3_f32 v{r+3}, v{r+3}, v{r+4}, v{r+5}")
        a(f"v_max3_f32 v{r}, v{r}, v{r+6}, v{r+7}")
        a(f"v_max_f32 v{r}, v{r}, v{r+3}")
        a(f"v_mul_f32 v{48+t}, s57, v{r}")
    stamp(a, "max done")

    def exp_items(j):
        kb, u = j >> 1, j & 1
        it = []
        for t in range(2):
            R = [S(kb, t, 8 * u + r) for r in range(8)]
            for r in R:
                it.append(lambda t=t, r=r: a(f"v_fma_f32 v{r}, v{r}, s57, -v{48+t}"))
        for t in range(2):
            R = [S(kb, t, 8 * u + r) for r in range(8)]
            for r in R:
                it.append(lambda t=t, r=r: a(f"v_exp_f32 v{r}, v{r}"))
        for t in range(2):
            R = [S(kb, t, 8 * u + r) for r in range(8)]
            for r in R:
                it.append(lambda t=t, r=r: a(f"v_add_f32 v{50+2*t+(r&1)}, v{50+2*t+(r&1)}, v{r}"))
            for i in range(4):
                it.append(lambda t=t, i=i, R=R: a(f"v_cvt_pk_bf16_f32 v{R[i]}, v{R[2*i]}, v{R[2*i+1]}"))
        return it

    def pv_parts(j):
        kb, u = j >> 1, j & 1
        def rd(ws_):
            fb = 16 + 8 * ws_
            ad = KU[kb][ws_] * 8192 + u * 4096
            vb = 30 + (ad >> 16)
            ad &= 65535
            a.lds(f"ds_read_b64_tr_b16 a[{fb}:{fb+1}], v{vb} offset:{ad}", f"p{ws_}")
            a.lds(f"ds_read_b64_tr_b16 a[{fb+2}:{fb+3}], v{vb} offset:{ad + 2048}", f"p{ws_}")
            a.lds(f"ds_read_b128 a[{fb+4}:{fb+7}], v42 offset:{(j&1)*16384 + ws_*2048}", f"p{ws_}")
        def mf(ws_):
            a.wait(lds=f"p{ws_}")
            if ws_ + 4 < 8:
                rd(ws_ + 4)
            fb = 16 + 8 * ws_
            c_ = "0" if (j == 0 and ws_ == 0) else "a[0:15]"
            a(f"v_mfma_f32_32x32x16_bf16 a[0:15], a[{fb}:{fb+3}], a[{fb+4}:{fb+7}], {c_}")
        return rd, mf

    def p_write(j):
        kb, u = j >> 1, j & 1
        for t in range(2):
            p = S(kb, t, 8 * u)
            a.lds(f"ds_write_b128 v38, v[{p}:{p+3}] offset:{(j&1)*16384 + t*1024}", "pw")

    def l_items():
        def f():
            for t in range(2):
                a(f"v_add_f32 v{50+2*t}, v{50+2*t}, v{51+2*t}")
                a(f"v_mov_b32 v{51+2*t}, v{50+2*t}")
            a(f"v_add_u32 v37, {LX - MX}, v37")
            for t in range(2):
                a(f"v_permlane32_swap_b32 v{50+2*t}, v{51+2*t}")
            for t in range(2):
                a(f"v_add_f32 v{50+2*t}, v{50+2*t}, v{51+2*t}")
            for t in range(2):
                a.lds(f"ds_write_b32 v37, v{50+2*t} offset:{t*1024}", "lw")
        return f

    ex = exp_items(0)
    vq.pop(0)()
    for f in ex[:16]:
        f()
    vq.pop(0)()
    a.wait(lds="wow")
    for i in range(2):
        a.lds(f"ds_read_b64_tr_b16 v[{56+4*i}:{57+4*i}], v39 offset:{i*64}", "wo")
        a.lds(f"ds_read_b64_tr_b16 v[{58+4*i}:{59+4*i}], v39 offset:{i*64+512}", "wo")
    for f in ex[16:36]:
        f()
    vq.pop(0)()
    for f in ex[36:]:
        f()
    a.wait(lds="wo")
    p_write(0)
    for i in range(2):
        a(f"s_add_u32 s{68+i}, s58, {WOF_BASE + i * 262144}")
        a.vm(f"buffer_store_dwordx4 v[{56+4*i}:{59+4*i}], v35, s[40:43], s{68+i} offen sc0 sc1", "st")
    stamp(a, "exp0")
    a.wait(lds="all", vm="V0")
    a("s_barrier")
    stamp(a, "B0")
    for j in range(1, 4):
        rd, mf = pv_parts(j - 1)
        ex = exp_items(j)
        for q_ in range(4):
            rd(q_)
        for f in ex[:PV_HEAD]:
            f()
        ex = ex[PV_HEAD:]
        done = False
        for ws_ in range(8):
            mf(ws_)
            if vq and ws_ % 3 == 0:
                vq.pop(0)()
            for _ in range(PV_PER):
                if ex:
                    ex.pop(0)()
            if not ex and not done:
                done = True
                p_write(j)
                if j == 3:
                    l_items()()
        assert done
        if j == 1: stamp(a, "pv0exp1")
        stamp(a, f"e{j} pre")
        a.wait(lds="all", vm=("V1" if j == 2 else None))
        stamp(a, f"e{j} w")
        a("s_barrier")
        stamp(a, f"e{j} b")
    stamp(a, "exp done")
    a(f"v_add_u32 v36, {LX - MX}, v36")
    a("v_lshl_add_u32 v36, v45, 10, v36")
    for hh in range(2):
        a.lds(f"ds_read_b128 v[{128+4*hh}:{131+4*hh}], v36 offset:{hh*16}", "lr")
    rd, mf = pv_parts(3)
    for q_ in range(4):
        rd(q_)
    a("s_lshl_b32 s58, s46, 19"); a("s_lshl_b32 s59, s48, 13"); a("s_add_u32 s58, s58, s59")
    a("s_and_b32 s59, s49, 3"); a("s_lshl_b32 s59, s59, 11"); a("s_add_u32 s58, s58, s59")
    a("s_lshr_b32 s59, s49, 2"); a("s_lshl_b32 s59, s59, 18"); a("s_add_u32 s58, s58, s59")
    def lfin():
        for i in range(4):
            a(f"v_add_f32 v{128+i}, v{128+i}, v{132+i}")
        a("v_add_f32 v128, v128, v129")
        a("v_add_f32 v130, v130, v131")
        a("v_add_f32 v128, v128, v130")
        a("v_rcp_f32 v128, v128")
    rd, mf = pv_parts(3)
    for ws_ in range(8):
        mf(ws_)
        if ws_ == 1:
            lfin()
    stamp(a, "PV done")
    for r in range(16):
        a(f"v_accvgpr_read_b32 v{64+r}, a{r}")
    for r in range(16):
        a(f"v_mul_f32 v{64+r}, v{64+r}, v128")
    for i in range(8):
        a(f"v_cvt_pk_bf16_f32 v{80+i}, v{64+2*i}, v{65+2*i}")
    for e in range(2):
        r = 80 + 4 * e
        off = " offset:1024" if e else ""
        a.vm(f"buffer_store_dwordx4 v[{r}:{r+3}], v35, s[40:43], s58 offen{off} sc0 sc1", "st")
    a.wait(vm="all")
    stamp(a, "end")
    if STAMP:
        a("s_memrealtime s[98:99]")
        a("s_waitcnt lgkmcnt(0)")
        a("s_sub_u32 s96, s98, s96")
    dump_stamps(a)
    a.label("L1_done")
    a("s_endpgm")


def gen_k2(a):
    a.raw(".globl oproj_kernel\n.p2align 8\n.type oproj_kernel,@function")
    a.label("oproj_kernel")
    a("s_cmp_ge_u32 s2, 256")
    a("s_cbranch_scc1 L2_done")
    a("s_load_dwordx2 s[14:15], s[0:1], 40")
    a("s_load_dwordx2 s[18:19], s[0:1], 56")
    a("s_and_b32 s44, s2, 7")
    a("s_lshr_b32 s45, s2, 3")
    lm = K2MAP; ln = 5 - K2MAP
    mg = 4 - lm
    a(f"s_and_b32 s46, s44, {(1<<mg)-1}"); a(f"s_lshl_b32 s46, s46, {lm}"); a(f"s_and_b32 s47, s45, {(1<<lm)-1}"); a("s_add_u32 s46, s46, s47")
    a(f"s_lshr_b32 s48, s44, {mg}"); a(f"s_lshl_b32 s48, s48, {ln}"); a(f"s_lshr_b32 s47, s45, {lm}"); a("s_add_u32 s48, s48, s47")
    a("v_lshrrev_b32 v1, 6, v0")
    a("v_and_b32 v2, 63, v0")
    a("v_lshlrev_b32 v3, 4, v2")
    a("v_lshl_add_u32 v4, v1, 16, v3")
    a("s_waitcnt lgkmcnt(0)")
    srd(a, 40, 18, 19, WS_BYTES)
    srd(a, 36, 14, 15, 8 * 64 * 512 * 2)
    a("s_lshl_b32 s50, s48, 18"); a(f"s_add_u32 s50, s50, {WOF_BASE}")
    a("s_lshl_b32 s51, s46, 18")
    NB = 8
    NSET = 4
    def regA(set_, i): return set_ * 64 + i * 8
    a("s_and_b32 s54, s45, 3"); a("s_lshl_b32 s54, s54, 1"); a("s_lshr_b32 s55, s45, 2"); a("s_add_u32 s54, s54, s55")
    if K2NOROT:
        a("s_mov_b32 s54, 0")
    def issue(bt):
        set_ = bt % NSET
        a(f"s_add_u32 s56, s54, {bt}")
        a("s_and_b32 s56, s56, 7")
        a("s_lshl_b32 s56, s56, 13")
        a("s_add_u32 s57, s56, s50")
        a("s_add_u32 s58, s56, s51")
        for half in range(NB // 4):
            a(f"s_add_u32 s{60+half*2}, s57, {half*4096}")
            a(f"s_add_u32 s{61+half*2}, s58, {half*4096}")
            for i in range(4):
                r = regA(set_, half * 4 + i)
                off = f" offset:{i*1024}" if i else ""
                a.vm(f"buffer_load_dwordx4 a[{r}:{r+3}], v4, s[40:43], s{60+half*2} offen{off}", f"b{bt}_{half*4+i}")
                a.vm(f"buffer_load_dwordx4 a[{r+4}:{r+7}], v4, s[40:43], s{61+half*2} offen{off}", f"b{bt}_{half*4+i}")
    nbt = 64 // NB
    for bt in range(3):
        issue(bt)
    for bt in range(nbt):
        set_ = bt % NSET
        for i in range(NB):
            a.wait(vm=f"b{bt}_{i}")
            if i == 0 and bt + 3 < nbt:
                issue(bt + 3)
            r = regA(set_, i)
            c_ = "0" if (bt == 0 and i == 0) else "v[16:31]"
            a(f"v_mfma_f32_32x32x16_bf16 v[16:31], a[{r}:{r+3}], a[{r+4}:{r+7}], {c_}")
    a("v_lshl_add_u32 v5, v1, 12, v3")
    for g in range(4):
        a.lds(f"ds_write_b128 v5, v[{16+4*g}:{19+4*g}] offset:{g*1024}", "w")
    a.wait(lds="all")
    a("s_barrier")
    a("v_lshl_add_u32 v5, v1, 10, v3")
    for ws_ in range(4):
        a.lds(f"ds_read_b128 v[{32+4*ws_}:{35+4*ws_}], v5 offset:{ws_*4096}", "r")
    a("v_and_b32 v6, 31, v2")
    a("v_lshrrev_b32 v7, 5, v2")
    a("v_lshlrev_b32 v6, 10, v6")
    a("v_lshl_add_u32 v6, v7, 3, v6")
    a("v_lshl_add_u32 v6, v1, 4, v6")
    a("s_lshl_b32 s52, s46, 15"); a("s_lshl_b32 s53, s48, 6"); a("s_add_u32 s52, s52, s53")
    a.wait(lds="all")
    for i in range(4):
        a(f"v_add_f32 v{32+i}, v{32+i}, v{36+i}")
        a(f"v_add_f32 v{40+i}, v{40+i}, v{44+i}")
    for i in range(4):
        a(f"v_add_f32 v{32+i}, v{32+i}, v{40+i}")
    a("v_cvt_pk_bf16_f32 v48, v32, v33")
    a("v_cvt_pk_bf16_f32 v49, v34, v35")
    a.vm("buffer_store_dwordx2 v[48:49], v6, s[36:39], s52 offen", "st")
    a.label("L2_done")
    a("s_endpgm")


def gen_k2b(a):
    a.raw(".globl oproj_kernel\n.p2align 8\n.type oproj_kernel,@function")
    a.label("oproj_kernel")
    a("s_cmp_ge_u32 s2, 256")
    a("s_cbranch_scc1 L2_done")
    a("s_load_dwordx2 s[14:15], s[0:1], 40")
    a("s_load_dwordx2 s[18:19], s[0:1], 56")
    a("s_and_b32 s44, s2, 7")
    a("s_lshr_b32 s45, s2, 3")
    a("s_and_b32 s46, s44, 3"); a("s_lshl_b32 s46, s46, 2"); a("s_and_b32 s47, s45, 3"); a("s_add_u32 s46, s46, s47")
    a("s_lshr_b32 s48, s44, 2"); a("s_lshl_b32 s48, s48, 3"); a("s_lshr_b32 s47, s45, 2"); a("s_add_u32 s48, s48, s47")
    a("v_lshrrev_b32 v1, 6, v0")
    a("v_and_b32 v2, 63, v0")
    a("v_lshlrev_b32 v3, 4, v2")
    a("v_lshl_add_u32 v4, v1, 15, v3")
    a("s_lshl_b32 s50, s48, 18"); a(f"s_add_u32 s50, s50, {WOF_BASE}")
    a("s_lshl_b32 s51, s46, 18")
    a("s_waitcnt lgkmcnt(0)")
    srd(a, 40, 18, 19, WS_BYTES)
    NB = 8
    NSET = 3
    def regA(set_, i): return set_ * 64 + i * 8
    def issue(bt):
        set_ = bt % NSET
        for half in range(NB // 4):
            a(f"s_add_u32 s{60+half*2}, s50, {(bt*NB+half*4)*1024}")
            a(f"s_add_u32 s{61+half*2}, s51, {(bt*NB+half*4)*1024}")
            for i in range(4):
                r = regA(set_, half * 4 + i)
                off = f" offset:{i*1024}" if i else ""
                a.vm(f"buffer_load_dwordx4 a[{r}:{r+3}], v4, s[40:43], s{60+half*2} offen{off}", f"b{bt}_{half*4+i}")
                a.vm(f"buffer_load_dwordx4 a[{r+4}:{r+7}], v4, s[40:43], s{61+half*2} offen{off}", f"b{bt}_{half*4+i}")
    nbt = 32 // NB
    for bt in range(3):
        issue(bt)
    srd(a, 36, 14, 15, 8 * 64 * 512 * 2)
    a("v_and_b32 v6, 31, v2")
    a("v_lshrrev_b32 v7, 5, v2")
    a("v_lshlrev_b32 v6, 10, v6")
    a("v_lshl_add_u32 v6, v7, 3, v6")
    a("v_lshrrev_b32 v7, 1, v1")
    a("v_lshl_add_u32 v6, v7, 4, v6")
    a("v_and_b32 v7, 1, v1")
    a("v_lshl_add_u32 v6, v7, 2, v6")
    a("s_lshl_b32 s52, s46, 15"); a("s_lshl_b32 s53, s48, 6"); a("s_add_u32 s52, s52, s53")
    a("v_lshlrev_b32 v8, 3, v2")
    a("v_lshl_add_u32 v5, v1, 12, v8")
    a("v_lshl_add_u32 v9, v1, 9, v8")
    for bt in range(nbt):
        set_ = bt % NSET
        for i in range(NB):
            a.wait(vm=f"b{bt}_{i}")
            r = regA(set_, i)
            c_ = "0" if (bt == 0 and i == 0) else "v[16:31]"
            a(f"v_mfma_f32_32x32x16_bf16 v[16:31], a[{r}:{r+3}], a[{r+4}:{r+7}], {c_}")
        if bt + 3 < nbt:
            issue(bt + 3)
    for p in range(8):
        a.lds(f"ds_write_b64 v5, v[{16+2*p}:{17+2*p}] offset:{p*512}", "w")
    a.wait(lds="all")
    a("s_barrier")
    for ws_ in range(8):
        a.lds(f"ds_read_b64 v[{32+2*ws_}:{33+2*ws_}], v9 offset:{ws_*4096}", "r")
    a.wait(lds="all")
    for i in range(2):
        a(f"v_add_f32 v{32+i}, v{32+i}, v{34+i}")
        a(f"v_add_f32 v{36+i}, v{36+i}, v{38+i}")
        a(f"v_add_f32 v{40+i}, v{40+i}, v{42+i}")
        a(f"v_add_f32 v{44+i}, v{44+i}, v{46+i}")
    for i in range(2):
        a(f"v_add_f32 v{32+i}, v{32+i}, v{36+i}")
        a(f"v_add_f32 v{40+i}, v{40+i}, v{44+i}")
    for i in range(2):
        a(f"v_add_f32 v{32+i}, v{32+i}, v{40+i}")
    a("v_cvt_pk_bf16_f32 v48, v32, v33")
    a.vm("buffer_store_dword v48, v6, s[36:39], s52 offen", "st")
    a.label("L2_done")
    a("s_endpgm")


def desc(name, vgpr, accum, sgpr=102):
    return f""".amdhsa_kernel {name}
  .amdhsa_next_free_vgpr {vgpr}
  .amdhsa_next_free_sgpr {sgpr}
  .amdhsa_accum_offset {accum}
  .amdhsa_group_segment_fixed_size 0
  .amdhsa_kernarg_size 64
  .amdhsa_user_sgpr_count 2
  .amdhsa_user_sgpr_kernarg_segment_ptr 1
  .amdhsa_system_sgpr_workgroup_id_x 1
.end_amdhsa_kernel
"""


def main():
    hdr = open("standalone__gqa_block_cached__near_ridge.s.ref").read().split("\n")
    hdr = [l for l in hdr if l.startswith(";") and "launch" not in l.lower()]
    txt = "\n".join(hdr) + "\n"
    txt += "; @launch kernel=attn_kernel grid=(256,1,1) block=(512,1,1) lds=163840\n"
    K2B = "--k2a" not in sys.argv
    if K2B:
        txt += "; @launch kernel=oproj_kernel grid=(256,1,1) block=(512,1,1) lds=32768\n"
    else:
        txt += "; @launch kernel=oproj_kernel grid=(256,1,1) block=(256,1,1) lds=16384\n"
    txt += '.amdgcn_target "amdgcn-amd-amdhsa--gfx950"\n.text\n'
    a1 = Asm(); gen_k1(a1)
    a2 = Asm(); (gen_k2b if K2B else gen_k2)(a2)
    txt += a1.text() + a2.text()
    txt += '.section .rodata,"a"\n.p2align 6\n' + desc("attn_kernel", 256, 144)
    txt += ".p2align 6\n" + (desc("oproj_kernel", 64 + 192, 64) if K2B else desc("oproj_kernel", 64 + 256, 64))
    open(OUT, "w").write(txt)
    print("k1 lines", len(a1.lines), "nops", a1.nops, " k2 lines", len(a2.lines), "nops", a2.nops)


main()
```

```python
import sys, math, struct
from asmlib import Asm

OUT = sys.argv[1] if len(sys.argv) > 1 and not sys.argv[1].startswith("--") else "standalone__gqa_block_cached__near_ridge.s"

STAMP = "--stamp" in sys.argv
PREFETCH = "--nopf" not in sys.argv
K2NOROT = True
NINIT = 6
for _a in sys.argv:
    if _a.startswith("--ninit="): NINIT = int(_a[8:])
PV_HEAD = 20
PV_PER = 6
PRIO = 0
SMOOTH = 0
for _a in sys.argv:
    if _a.startswith('--smooth='): SMOOTH = int(_a[9:]); NINIT = SMOOTH
for _a in sys.argv:
    if _a.startswith("--pvhead="): PV_HEAD = int(_a[9:])
    if _a.startswith("--pvper="): PV_PER = int(_a[8:])
    if _a.startswith("--prio="): PRIO = int(_a[7:])
K2MAP = 2
for _a in sys.argv:
    if _a.startswith("--k2map="): K2MAP = int(_a[8:])
WOF_BASE = 4 << 20
WS_BYTES = 8 << 20

def f32bits(x):
    return struct.unpack("<I", struct.pack("<f", x))[0]

SCALE_LOG2E = (128 ** -0.5) * math.log2(math.e)

QS = [i * 24576 for i in range(6)]
QBUF = [0, 1, 2, 3, 4, 5, 0, 1]
KU = [[18, 19, 6, 7, 8, 9, 10, 11], [12, 13, 14, 15, 16, 17, 0, 1]]
QX = 16384
MX = QX + 16384
LX = 18 * 8192


def slot_base(kb):
    return (KV_EARLY + kb * 8192) if kb < 2 else (KV_LATE + (kb - 2) * 8192)


def srd(a, d, lo, hi, nbytes):
    a(f"s_mov_b32 s{d}, s{lo}")
    a(f"s_mov_b32 s{d+1}, s{hi}")
    if isinstance(nbytes, int):
        a(f"s_mov_b32 s{d+2}, {nbytes}")
    else:
        a(f"s_mov_b32 s{d+2}, s{nbytes[1:]}")
    a(f"s_mov_b32 s{d+3}, 0x00020000")


_stamps = []
STAMPSET = None
for _arg in sys.argv:
    if _arg.startswith("--stamps="):
        STAMPSET = _arg[9:].split(",")
def stamp(a, name):
    if not STAMP or (STAMPSET is not None and name not in STAMPSET):
        return
    i = len(_stamps)
    _stamps.append(name)
    a.wait(lds="all")
    a("s_memtime s[78:79]")
    a("s_waitcnt lgkmcnt(0)")
    a(f"s_mov_b32 s{80+i}, s78")

def dump_stamps(a):
    if not STAMP:
        return
    a("s_cmp_lg_u32 s2, 37")
    a("s_cbranch_scc1 L1_nostamp")
    a("s_and_b32 s59, s49, 3")
    a("s_cmp_lg_u32 s59, 0")
    a("s_cbranch_scc1 L1_nostamp")
    srd(a, 20, 16, 17, 256)
    a("s_lshl_b32 s59, s49, 5")
    for i in range(len(_stamps)):
        a(f"v_mov_b32 v3, s{80+i}")
        a(f"v_mov_b32 v4, {4*i}")
        a(f"buffer_store_dword v3, v4, s[20:23], s59 offen")
        a("s_waitcnt vmcnt(0)")
    a.label("L1_nostamp")
    print("stamps:", _stamps)

def gen_k1(a):
    a.raw(".globl attn_kernel\n.p2align 8\n.type attn_kernel,@function")
    a.label("attn_kernel")
    a("s_cmp_ge_u32 s2, 256")
    a("s_cbranch_scc1 L1_done")
    a("s_load_dwordx16 s[4:19], s[0:1], 0")
    a("s_and_b32 s44, s2, 7")
    a("s_lshr_b32 s45, s2, 3")
    a("s_lshr_b32 s46, s45, 2")
    a("s_and_b32 s47, s45, 3")
    a("s_lshl_b32 s48, s44, 2")
    a("s_add_u32 s48, s48, s47")
    a("v_lshrrev_b32 v1, 6, v0")
    a("v_and_b32 v2, 63, v0")
    a("v_readfirstlane_b32 s49, v1")
    a("v_and_b32 v50, 3, v1")
    a("v_lshrrev_b32 v51, 2, v1")
    a("v_lshrrev_b32 v3, 4, v2")
    a("v_and_b32 v4, 15, v2")
    a("v_lshlrev_b32 v5, 2, v3")
    a("v_xor_b32 v5, v4, v5")
    a("v_lshlrev_b32 v5, 4, v5")
    a("v_lshl_add_u32 v8, v3, 13, v5")
    a("v_lshl_add_u32 v9, v3, 8, v5")
    a("v_lshl_add_u32 v6, v50, 2, v3")
    a("v_xor_b32 v6, v4, v6")
    a("v_lshlrev_b32 v6, 4, v6")
    a("v_lshl_add_u32 v10, v3, 8, v6")
    a("v_lshrrev_b32 v6, 3, v2")
    a("v_and_b32 v7, 7, v2")
    a("v_and_b32 v36, 1, v1")
    a("v_lshl_add_u32 v36, v36, 2, v3")
    a("v_and_b32 v36, 7, v36")
    a("v_xor_b32 v36, v7, v36")
    a("v_lshlrev_b32 v36, 4, v36")
    a("v_lshl_add_u32 v14, v6, 10, v36")
    a("v_lshlrev_b32 v16, 4, v7")
    a("v_lshl_add_u32 v16, v6, 10, v16")
    a("v_lshl_add_u32 v16, v1, 7, v16")
    a("v_lshrrev_b32 v36, 5, v2")
    a("v_and_b32 v37, 31, v2")
    a("v_and_b32 v38, 1, v3")
    a("v_lshrrev_b32 v39, 2, v2")
    a("v_and_b32 v39, 3, v39")
    a("v_and_b32 v40, 3, v2")
    a("v_lshrrev_b32 v41, 1, v40")
    a("v_and_b32 v42, 1, v40")
    a("v_lshlrev_b32 v43, 2, v39")
    a("v_lshl_add_u32 v43, v38, 1, v43")
    a("v_lshl_add_u32 v48, v36, 3, v39")
    a("v_lshlrev_b32 v47, 7, v48")
    a("v_lshl_add_u32 v47, v38, 5, v47")
    a("v_lshl_add_u32 v47, v40, 3, v47")
    a("v_lshlrev_b32 v48, 8, v48")
    a("v_add_u32 v49, v43, v41")
    a("v_lshl_add_u32 v48, v49, 4, v48")
    a("v_lshl_add_u32 v48, v42, 3, v48")
    a("v_lshlrev_b32 v49, 6, v50")
    a("v_xor_b32 v17, v48, v49")
    a("v_lshl_add_u32 v48, v36, 2, v39")
    a("v_lshlrev_b32 v48, 8, v48")
    a("v_add_u32 v52, v43, v42")
    a("v_lshl_add_u32 v48, v52, 4, v48")
    a("v_lshl_add_u32 v48, v41, 3, v48")
    a("v_xor_b32 v30, v48, v49")
    a(f"v_add_u32 v31, 65536, v30")
    a(f"v_add_u32 v32, 131072, v30")
    a("v_lshrrev_b32 v48, 1, v37")
    a("v_and_b32 v48, 7, v48")
    a("v_xor_b32 v48, v36, v48")
    a("v_lshlrev_b32 v48, 4, v48")
    a("v_lshl_add_u32 v48, v37, 7, v48")
    a("v_lshl_add_u32 v48, v51, 12, v48")
    for kc in range(4):
        a(f"v_xor_b32 v{18+kc}, {kc<<5}, v48")
    a("v_and_b32 v48, 15, v37")
    a("v_xor_b32 v48, v36, v48")
    a("v_lshlrev_b32 v48, 4, v48")
    a("v_lshl_add_u32 v48, v37, 8, v48")
    for c in range(8):
        a(f"v_xor_b32 v{22+c}, {c<<5}, v48")
    a("v_and_b32 v48, 15, v37")
    a("v_lshlrev_b32 v49, 2, v50")
    a("v_xor_b32 v48, v48, v49")
    a("v_lshlrev_b32 v48, 4, v48")
    a("v_lshl_add_u32 v48, v37, 8, v48")
    a("v_lshl_add_u32 v48, v51, 13, v48")
    a("v_lshl_add_u32 v34, v36, 3, v48")
    a("v_lshlrev_b32 v35, 4, v2")
    a("v_mov_b32 v46, v37")
    a("v_mov_b32 v45, v51")
    a("s_waitcnt lgkmcnt(0)")
    a("s_lshl_b32 s50, s46, 16")
    a("s_add_u32 s4, s4, s50"); a("s_addc_u32 s5, s5, 0")
    srd(a, 20, 4, 5, 65536)
    a("s_lshl_b32 s50, s46, 20"); a("s_lshl_b32 s51, s44, 17"); a("s_add_u32 s50, s50, s51")
    a("s_add_u32 s6, s6, s50"); a("s_addc_u32 s7, s7, 0")
    srd(a, 24, 6, 7, 131072)
    a("s_add_u32 s8, s8, s50"); a("s_addc_u32 s9, s9, 0")
    srd(a, 28, 8, 9, 131072)
    a("s_lshl_b32 s50, s48, 8")
    a("s_add_u32 s10, s10, s50"); a("s_addc_u32 s11, s11, 0")
    a(f"s_sub_u32 s51, {512*4096*2}, s50")
    srd(a, 32, 10, 11, "s51")
    a("s_lshl_b32 s50, s2, 14")
    a("s_add_u32 s12, s12, s50"); a("s_addc_u32 s13, s13, 0")
    srd(a, 36, 12, 13, 16384)
    srd(a, 40, 18, 19, WS_BYTES)
    a("s_lshl_b32 s52, s49, 10")
    a("s_lshl_b32 s53, s49, 15")
    a("s_lshl_b32 s54, s49, 11")
    a("s_lshl_b32 s55, s49, 13")
    a("s_lshl_b32 s56, s49, 14")
    a(f"s_mov_b32 s57, {f32bits(SCALE_LOG2E)}")
    rot = [0]
    NT = ""
    a("s_lshl_b32 s58, s47, 1")
    a("s_add_u32 s58, s58, s46")
    if "--norot" in sys.argv:
        a("s_mov_b32 s58, 0")
    a("s_mov_b32 s68, 0")
    a("s_mov_b32 s69, 8192")

    def sreg_next():
        r = 60 + rot[0] % 8
        rot[0] += 1
        return r

    def q_items(s):
        buf = QS[QBUF[s]]
        items = []
        def pre():
            a(f"s_add_u32 s59, s58, {s}")
            a("s_and_b32 s59, s59, 7")
            a("s_lshl_b32 s74, s59, 19")
            a("s_add_u32 s74, s74, s53")
            a("s_lshl_b32 s75, s59, 7")
            a("s_add_u32 s75, s75, s55")
        for j in range(2):
            def f(j=j):
                if j == 0:
                    pre()
                r = sreg_next()
                a(f"s_add_u32 m0, s52, {buf + j*8192}")
                a(f"s_add_u32 s{r}, s74, {j*262144}")
                a.vm(f"buffer_load_dwordx4 v8, s[32:35], s{r} offen{NT} lds", f"Q{s}")
            items.append(f)
        def f():
            a(f"s_add_u32 m0, s52, {buf + 16384}")
            a.vm(f"buffer_load_dwordx4 v14, s[20:23], s75 offen lds", f"Q{s}")
        items.append(f)
        return items

    a("s_add_u32 s59, s49, 18"); a("s_add_u32 s70, s49, 4")
    a("s_cmp_lt_u32 s49, 2"); a("s_cselect_b32 s70, s59, s70"); a("s_lshl_b32 s70, s70, 13")
    a("s_add_u32 s59, s49, 12"); a("s_sub_u32 s71, s49, 6")
    a("s_cmp_lt_u32 s49, 6"); a("s_cselect_b32 s71, s59, s71"); a("s_lshl_b32 s71, s71, 13")
    a("s_and_b32 s72, s47, 1")
    if "--norot" in sys.argv:
        a("s_mov_b32 s72, 0")
    a("s_lshl_b32 s72, s72, 13"); a("s_xor_b32 s73, s72, 8192")
    a("s_add_u32 s72, s72, s52"); a("s_add_u32 s73, s73, s52")

    def k_item(kb, ws_):
        def f():
            r = sreg_next()
            a(f"s_add_u32 m0, s52, {KU[kb][ws_] * 8192}")
            a(f"s_add_u32 s{r}, s{72+kb}, {ws_ * 16384}")
            a.vm(f"buffer_load_dwordx4 v10, s[24:27], s{r} offen{NT} lds", f"K{kb}")
        return f

    def v_items(kb):
        items = []
        for half in range(2):
            for i in range(4):
                def f(half=half, i=i):
                    if i == 0:
                        a(f"s_sub_u32 s76, s{72+kb}, s52")
                        a("s_add_u32 s76, s76, s56")
                        if half:
                            a("s_add_u32 s76, s76, 4096")
                    a(f"s_add_u32 m0, s{70+kb}, {half*4096}")
                    off = f" offset:{i*1024}" if i else ""
                    a.vm(f"buffer_load_dwordx4 v9, s[28:31], s76 offen{off}{NT} lds", f"V{kb}")
                items.append(f)
        return items

    def wo_items():
        return [lambda i=i: a.vm(f"buffer_load_dwordx4 v[{56+4*i}:{59+4*i}], v16, s[36:39], s{68+i} offen{NT}", "WO")
                for i in range(2)]

    def interleave(main, side, every=1, per=1, first=0):
        side = list(side)
        for i, m in enumerate(main):
            m()
            if i >= first and (i - first) % every == 0:
                for _ in range(per):
                    if side:
                        side.pop(0)()
        for f in side:
            f()

    if PRIO:
        a("s_cmp_ge_u32 s49, 4")
        a("s_cbranch_scc0 L1_prio" if PRIO == 1 else "s_cbranch_scc1 L1_prio")
        a("s_setprio 1")
        a.label("L1_prio")
    if STAMP:
        a("s_memrealtime s[96:97]")
        a("s_waitcnt lgkmcnt(0)")
    stamp(a, "start")
    for s in range(NINIT):
        for f in q_items(s):
            f()
    late0 = []
    for s in range(NINIT, 6):
        late0 += q_items(s)
    late0 += [k_item(0, 0), k_item(0, 1)]
    if NINIT == 6:
        for f in late0:
            f()
        late0 = []

    QACC = 0
    stamp(a, "issued")
    def qreads(s):
        buf = QS[QBUF[s]]
        fb = 64 + 32 * (s & 1)
        ab = 36 + 5 * (s & 1) if False else 36
        a(f"v_add_u32 v36, {buf}, v17")
        for kc in range(4):
            a(f"v_add_u32 v{37+kc}, {buf + 16384}, v{18+kc}")
        for kc in range(4):
            a.lds(f"ds_read_b64_tr_b16 v[{fb+4*kc}:{fb+1+4*kc}], v36 offset:{kc*4096}", f"f{s}_{kc}")
            a.lds(f"ds_read_b64_tr_b16 v[{fb+2+4*kc}:{fb+3+4*kc}], v36 offset:{kc*4096+1024}", f"f{s}_{kc}")
            a.lds(f"ds_read_b128 v[{fb+16+4*kc}:{fb+19+4*kc}], v{37+kc}", f"f{s}_{kc}")
    a.wait(vm="Q0")
    a("s_barrier")
    stamp(a, "Qs0")
    qreads(0)
    for s in range(8):
        a.comment(f"---- Q stage {s}")
        fb = 64 + 32 * (s & 1)
        KI = lambda i_: k_item(i_ >> 3, i_ & 7)
        if SMOOTH == 3:
            side = {0: q_items(3) + q_items(4), 1: q_items(5) + q_items(6), 2: q_items(7) + wo_items(),
                    3: [KI(i_) for i_ in range(0, 5)], 4: [KI(i_) for i_ in range(5, 10)],
                    5: [KI(i_) for i_ in range(10, 14)], 6: [KI(i_) for i_ in (14, 15)], 7: []}[s]
        elif SMOOTH == 4:
            side = {0: q_items(4) + q_items(5), 1: q_items(6) + q_items(7), 2: wo_items() + [KI(i_) for i_ in range(0, 4)],
                    3: [KI(i_) for i_ in range(4, 8)], 4: [KI(i_) for i_ in range(8, 11)],
                    5: [KI(i_) for i_ in range(11, 14)], 6: [KI(i_) for i_ in (14, 15)], 7: []}[s]
        else:
            side = {0: late0 + q_items(6) + wo_items(), 1: q_items(7),
                2: [k_item(0, w_) for w_ in (2, 3, 4)], 3: [k_item(0, w_) for w_ in (5, 6, 7)],
                4: [k_item(1, w_) for w_ in (0, 1, 2)], 5: [k_item(1, w_) for w_ in (3, 4, 5)],
                6: [k_item(1, w_) for w_ in (6, 7)], 7: []}[s]
        a.wait(lds="all")
        def mf(kc):
            acc = f"a[{QACC}:{QACC+15}]"
            c_ = "0" if (s == 0 and kc == 0) else acc
            a(f"v_mfma_f32_32x32x16_bf16 {acc}, v[{fb+4*kc}:{fb+3+4*kc}], v[{fb+16+4*kc}:{fb+19+4*kc}], {c_}")
        mf(0)
        if s < 7:
            a.wait(vm=f"Q{s+1}")
        a("s_barrier")
        stamp(a, f"Qs{s+1}")
        if s < 7:
            qreads(s + 1)
        interleave([lambda kc=kc: mf(kc) for kc in range(1, 4)], side, per=2)
    stamp(a, "Qdone")
    for gg in range(4):
        b0 = 64 + gg * 8
        for i in range(4):
            a(f"v_accvgpr_read_b32 v{b0+i}, a{QACC+4*gg+i}")
        a(f"v_cvt_pk_bf16_f32 v{b0+4}, v{b0}, v{b0+1}")
        a(f"v_cvt_pk_bf16_f32 v{b0+5}, v{b0+2}, v{b0+3}")
        a(f"v_xor_b32 v{b0+6}, {gg<<4}, v34")
        a(f"v_add_u32 v{b0+6}, {QX}, v{b0+6}")
        a.lds(f"ds_write_b64 v{b0+6}, v[{b0+4}:{b0+5}]", "qw")
    for c in range(8):
        a(f"v_add_u32 v{36+c}, {QX}, v{22+c}")
    a.wait(lds="all", vm="K0")
    stamp(a, "Qx w")
    a("s_barrier")
    stamp(a, "Qx b2")
    QB = 16
    for t in range(2):
        for c in range(8):
            r = QB + (t * 8 + c) * 4
            a.lds(f"ds_read_b128 a[{r}:{r+3}], v{36+c} offset:{t*8192}", f"qr{t}")
        if t == 0:
            a.wait(lds="all")

    stamp(a, "Qx done")
    def S(kb, t, r):
        return 64 + (kb * 2 + t) * 16 + r
    def kfrag(kb, c):
        return f"v[{96+4*c}:{99+4*c}]" if kb == 0 else f"a[{80+4*c}:{83+4*c}]"
    def kreads(kb):
        for c in range(8):
            a(f"v_add_u32 v{36+c}, s{70+kb}, v{22+c}")
        for c in range(8):
            a.lds(f"ds_read_b128 {kfrag(kb,c)}, v{36+c}", f"k{kb}")
    a.wait(lds="all")
    kreads(0)
    for kb in range(2):
        a.wait(lds=f"k{kb}")
        main = []
        for c in range(8):
            for t in range(2):
                def f(c=c, t=t):
                    sacc = f"v[{S(kb,t,0)}:{S(kb,t,15)}]"
                    r = QB + (t * 8 + c) * 4
                    c_ = "0" if c == 0 else sacc
                    a(f"v_mfma_f32_32x32x16_bf16 {sacc}, {kfrag(kb,c)}, a[{r}:{r+3}], {c_}")
                main.append(f)
        if kb == 1: stamp(a, "S0 done")
        if kb == 0:
            def kb1():
                stamp(a, "K1 pre")
                a.wait(vm="K1")
                stamp(a, "K1 w")
                a("s_barrier")
                stamp(a, "K1 b")
                kreads(1)
            vq = v_items(0)
            interleave(main[:8], [vq.pop(0), vq.pop(0)], every=4, first=1)
            kb1()
            interleave(main[8:], [vq.pop(0), vq.pop(0)], every=4, first=1)
        else:
            interleave(main, vq, every=4, first=1)
            vq = v_items(1)

    stamp(a, "S done")
    lists = [[S(kb, t, r) for kb in range(2) for r in range(16)] for t in range(2)]
    for t in range(2):
        for ch in range(2):
            L = lists[t][16 * ch:16 * ch + 16]
            a(f"v_max3_f32 v{48+2*t+ch}, v{L[0]}, v{L[1]}, v{L[2]}")
    for i in range(3, 15, 2):
        for t in range(2):
            for ch in range(2):
                L = lists[t][16 * ch:16 * ch + 16]
                a(f"v_max3_f32 v{48+2*t+ch}, v{48+2*t+ch}, v{L[i]}, v{L[i+1]}")
        if i in (3, 11):
            vq.pop(0)()
    for t in range(2):
        L0 = lists[t][15]; L1 = lists[t][31]
        a(f"v_max3_f32 v{48+2*t}, v{48+2*t}, v{L0}, v{L1}")
        a(f"v_max_f32 v{48+2*t}, v{48+2*t}, v{49+2*t}")
    for t in range(2):
        a(f"v_mov_b32 v{49+2*t}, v{48+2*t}")
    a("v_lshlrev_b32 v36, 5, v46")
    a(f"v_add_u32 v36, {MX}, v36")
    a("v_lshl_add_u32 v37, v1, 2, v36")
    for t in range(2):
        a(f"v_permlane32_swap_b32 v{48+2*t}, v{49+2*t}")
    for t in range(2):
        a(f"v_max_f32 v{48+2*t}, v{48+2*t}, v{49+2*t}")
    for t in range(2):
        a.lds(f"ds_write_b32 v37, v{48+2*t} offset:{t*1024}", "mw")
    a("v_add_u32 v38, s54, v35")
    a(f"v_add_u32 v38, {QX}, v38")
    stamp(a, "max pre")
    a.wait(lds="all", vm="WO")
    stamp(a, "max wo")
    a("s_barrier")
    stamp(a, "max b")
    for t in range(2):
        for hh in range(2):
            r = 128 + 8 * t + 4 * hh
            a.lds(f"ds_read_b128 v[{r}:{r+3}], v36 offset:{t*1024 + hh*16}", "mr")
    for i in range(2):
        a.lds(f"ds_write_b128 v38, v[{56+4*i}:{59+4*i}] offset:{i*1024}", "wow")
    a("v_add_u32 v39, s54, v47")
    a(f"v_add_u32 v39, {QX}, v39")
    a("s_lshl_b32 s58, s49, 19")
    a("s_lshl_b32 s59, s2, 10")
    a("s_add_u32 s58, s58, s59")
    for t in range(2):
        a(f"v_mov_b32 v{50+2*t}, 0")
        a(f"v_mov_b32 v{51+2*t}, 0")
    a("v_lshl_add_u32 v42, v45, 10, v35")
    a(f"v_add_u32 v42, {QX}, v42")
    a.wait(lds="mr")
    for t in range(2):
        r = 128 + 8 * t
        a(f"v_max3_f32 v{r}, v{r}, v{r+1}, v{r+2}")
        a(f"v_max3_f32 v{r+3}, v{r+3}, v{r+4}, v{r+5}")
        a(f"v_max3_f32 v{r}, v{r}, v{r+6}, v{r+7}")
        a(f"v_max_f32 v{r}, v{r}, v{r+3}")
        a(f"v_mul_f32 v{48+t}, s57, v{r}")
    stamp(a, "max done")

    def exp_items(j):
        kb, u = j >> 1, j & 1
        it = []
        for t in range(2):
            R = [S(kb, t, 8 * u + r) for r in range(8)]
            for r in R:
                it.append(lambda t=t, r=r: a(f"v_fma_f32 v{r}, v{r}, s57, -v{48+t}"))
        for t in range(2):
            R = [S(kb, t, 8 * u + r) for r in range(8)]
            for r in R:
                it.append(lambda t=t, r=r: a(f"v_exp_f32 v{r}, v{r}"))
        for t in range(2):
            R = [S(kb, t, 8 * u + r) for r in range(8)]
            for r in R:
                it.append(lambda t=t, r=r: a(f"v_add_f32 v{50+2*t+(r&1)}, v{50+2*t+(r&1)}, v{r}"))
            for i in range(4):
                it.append(lambda t=t, i=i, R=R: a(f"v_cvt_pk_bf16_f32 v{R[i]}, v{R[2*i]}, v{R[2*i+1]}"))
        return it

    def pv_parts(j):
        kb, u = j >> 1, j & 1
        def rd(ws_):
            fb = 16 + 8 * ws_
            ad = KU[kb][ws_] * 8192 + u * 4096
            vb = 30 + (ad >> 16)
            ad &= 65535
            a.lds(f"ds_read_b64_tr_b16 a[{fb}:{fb+1}], v{vb} offset:{ad}", f"p{ws_}")
            a.lds(f"ds_read_b64_tr_b16 a[{fb+2}:{fb+3}], v{vb} offset:{ad + 2048}", f"p{ws_}")
            a.lds(f"ds_read_b128 a[{fb+4}:{fb+7}], v42 offset:{(j&1)*16384 + ws_*2048}", f"p{ws_}")
        def mf(ws_):
            a.wait(lds=f"p{ws_}")
            if ws_ + 4 < 8:
                rd(ws_ + 4)
            fb = 16 + 8 * ws_
            c_ = "0" if (j == 0 and ws_ == 0) else "a[0:15]"
            a(f"v_mfma_f32_32x32x16_bf16 a[0:15], a[{fb}:{fb+3}], a[{fb+4}:{fb+7}], {c_}")
        return rd, mf

    def p_write(j):
        kb, u = j >> 1, j & 1
        for t in range(2):
            p = S(kb, t, 8 * u)
            a.lds(f"ds_write_b128 v38, v[{p}:{p+3}] offset:{(j&1)*16384 + t*1024}", "pw")

    def l_items():
        def f():
            for t in range(2):
                a(f"v_add_f32 v{50+2*t}, v{50+2*t}, v{51+2*t}")
                a(f"v_mov_b32 v{51+2*t}, v{50+2*t}")
            a(f"v_add_u32 v37, {LX - MX}, v37")
            for t in range(2):
                a(f"v_permlane32_swap_b32 v{50+2*t}, v{51+2*t}")
            for t in range(2):
                a(f"v_add_f32 v{50+2*t}, v{50+2*t}, v{51+2*t}")
            for t in range(2):
                a.lds(f"ds_write_b32 v37, v{50+2*t} offset:{t*1024}", "lw")
        return f

    ex = exp_items(0)
    vq.pop(0)()
    for f in ex[:16]:
        f()
    vq.pop(0)()
    a.wait(lds="wow")
    for i in range(2):
        a.lds(f"ds_read_b64_tr_b16 v[{56+4*i}:{57+4*i}], v39 offset:{i*64}", "wo")
        a.lds(f"ds_read_b64_tr_b16 v[{58+4*i}:{59+4*i}], v39 offset:{i*64+512}", "wo")
    for f in ex[16:36]:
        f()
    vq.pop(0)()
    for f in ex[36:]:
        f()
    a.wait(lds="wo")
    p_write(0)
    for i in range(2):
        a(f"s_add_u32 s{68+i}, s58, {WOF_BASE + i * 262144}")
        a.vm(f"buffer_store_dwordx4 v[{56+4*i}:{59+4*i}], v35, s[40:43], s{68+i} offen sc0 sc1", "st")
    stamp(a, "exp0")
    a.wait(lds="all", vm="V0")
    a("s_barrier")
    stamp(a, "B0")
    for j in range(1, 4):
        rd, mf = pv_parts(j - 1)
        ex = exp_items(j)
        for q_ in range(4):
            rd(q_)
        for f in ex[:PV_HEAD]:
            f()
        ex = ex[PV_HEAD:]
        done = False
        for ws_ in range(8):
            mf(ws_)
            if vq and ws_ % 3 == 0:
                vq.pop(0)()
            for _ in range(PV_PER):
                if ex:
                    ex.pop(0)()
            if not ex and not done:
                done = True
                p_write(j)
                if j == 3:
                    l_items()()
        assert done
        if j == 1: stamp(a, "pv0exp1")
        stamp(a, f"e{j} pre")
        a.wait(lds="all", vm=("V1" if j == 2 else None))
        stamp(a, f"e{j} w")
        a("s_barrier")
        stamp(a, f"e{j} b")
    stamp(a, "exp done")
    a(f"v_add_u32 v36, {LX - MX}, v36")
    a("v_lshl_add_u32 v36, v45, 10, v36")
    for hh in range(2):
        a.lds(f"ds_read_b128 v[{128+4*hh}:{131+4*hh}], v36 offset:{hh*16}", "lr")
    rd, mf = pv_parts(3)
    for q_ in range(4):
        rd(q_)
    a("s_lshl_b32 s58, s46, 19"); a("s_lshl_b32 s59, s48, 13"); a("s_add_u32 s58, s58, s59")
    a("s_and_b32 s59, s49, 3"); a("s_lshl_b32 s59, s59, 11"); a("s_add_u32 s58, s58, s59")
    a("s_lshr_b32 s59, s49, 2"); a("s_lshl_b32 s59, s59, 18"); a("s_add_u32 s58, s58, s59")
    def lfin():
        for i in range(4):
            a(f"v_add_f32 v{128+i}, v{128+i}, v{132+i}")
        a("v_add_f32 v128, v128, v129")
        a("v_add_f32 v130, v130, v131")
        a("v_add_f32 v128, v128, v130")
        a("v_rcp_f32 v128, v128")
    rd, mf = pv_parts(3)
    for ws_ in range(8):
        mf(ws_)
        if ws_ == 1:
            lfin()
    stamp(a, "PV done")
    for r in range(16):
        a(f"v_accvgpr_read_b32 v{64+r}, a{r}")
    for r in range(16):
        a(f"v_mul_f32 v{64+r}, v{64+r}, v128")
    for i in range(8):
        a(f"v_cvt_pk_bf16_f32 v{80+i}, v{64+2*i}, v{65+2*i}")
    for e in range(2):
        r = 80 + 4 * e
        off = " offset:1024" if e else ""
        a.vm(f"buffer_store_dwordx4 v[{r}:{r+3}], v35, s[40:43], s58 offen{off} sc0 sc1", "st")
    a.wait(vm="all")
    stamp(a, "end")
    if STAMP:
        a("s_memrealtime s[98:99]")
        a("s_waitcnt lgkmcnt(0)")
        a("s_sub_u32 s96, s98, s96")
    dump_stamps(a)
    a.label("L1_done")
    a("s_endpgm")


def gen_k2(a):
    a.raw(".globl oproj_kernel\n.p2align 8\n.type oproj_kernel,@function")
    a.label("oproj_kernel")
    a("s_cmp_ge_u32 s2, 256")
    a("s_cbranch_scc1 L2_done")
    a("s_load_dwordx2 s[14:15], s[0:1], 40")
    a("s_load_dwordx2 s[18:19], s[0:1], 56")
    a("s_and_b32 s44, s2, 7")
    a("s_lshr_b32 s45, s2, 3")
    lm = K2MAP; ln = 5 - K2MAP
    mg = 4 - lm
    a(f"s_and_b32 s46, s44, {(1<<mg)-1}"); a(f"s_lshl_b32 s46, s46, {lm}"); a(f"s_and_b32 s47, s45, {(1<<lm)-1}"); a("s_add_u32 s46, s46, s47")
    a(f"s_lshr_b32 s48, s44, {mg}"); a(f"s_lshl_b32 s48, s48, {ln}"); a(f"s_lshr_b32 s47, s45, {lm}"); a("s_add_u32 s48, s48, s47")
    a("v_lshrrev_b32 v1, 6, v0")
    a("v_and_b32 v2, 63, v0")
    a("v_lshlrev_b32 v3, 4, v2")
    a("v_lshl_add_u32 v4, v1, 16, v3")
    a("s_waitcnt lgkmcnt(0)")
    srd(a, 40, 18, 19, WS_BYTES)
    srd(a, 36, 14, 15, 8 * 64 * 512 * 2)
    a("s_lshl_b32 s50, s48, 18"); a(f"s_add_u32 s50, s50, {WOF_BASE}")
    a("s_lshl_b32 s51, s46, 18")
    NB = 8
    NSET = 4
    def regA(set_, i): return set_ * 64 + i * 8
    a("s_and_b32 s54, s45, 3"); a("s_lshl_b32 s54, s54, 1"); a("s_lshr_b32 s55, s45, 2"); a("s_add_u32 s54, s54, s55")
    if K2NOROT:
        a("s_mov_b32 s54, 0")
    def issue(bt):
        set_ = bt % NSET
        a(f"s_add_u32 s56, s54, {bt}")
        a("s_and_b32 s56, s56, 7")
        a("s_lshl_b32 s56, s56, 13")
        a("s_add_u32 s57, s56, s50")
        a("s_add_u32 s58, s56, s51")
        for half in range(NB // 4):
            a(f"s_add_u32 s{60+half*2}, s57, {half*4096}")
            a(f"s_add_u32 s{61+half*2}, s58, {half*4096}")
            for i in range(4):
                r = regA(set_, half * 4 + i)
                off = f" offset:{i*1024}" if i else ""
                a.vm(f"buffer_load_dwordx4 a[{r}:{r+3}], v4, s[40:43], s{60+half*2} offen{off}", f"b{bt}_{half*4+i}")
                a.vm(f"buffer_load_dwordx4 a[{r+4}:{r+7}], v4, s[40:43], s{61+half*2} offen{off}", f"b{bt}_{half*4+i}")
    nbt = 64 // NB
    for bt in range(3):
        issue(bt)
    for bt in range(nbt):
        set_ = bt % NSET
        for i in range(NB):
            a.wait(vm=f"b{bt}_{i}")
            if i == 0 and bt + 3 < nbt:
                issue(bt + 3)
            r = regA(set_, i)
            c_ = "0" if (bt == 0 and i == 0) else "v[16:31]"
            a(f"v_mfma_f32_32x32x16_bf16 v[16:31], a[{r}:{r+3}], a[{r+4}:{r+7}], {c_}")
    a("v_lshl_add_u32 v5, v1, 12, v3")
    for g in range(4):
        a.lds(f"ds_write_b128 v5, v[{16+4*g}:{19+4*g}] offset:{g*1024}", "w")
    a.wait(lds="all")
    a("s_barrier")
    a("v_lshl_add_u32 v5, v1, 10, v3")
    for ws_ in range(4):
        a.lds(f"ds_read_b128 v[{32+4*ws_}:{35+4*ws_}], v5 offset:{ws_*4096}", "r")
    a("v_and_b32 v6, 31, v2")
    a("v_lshrrev_b32 v7, 5, v2")
    a("v_lshlrev_b32 v6, 10, v6")
    a("v_lshl_add_u32 v6, v7, 3, v6")
    a("v_lshl_add_u32 v6, v1, 4, v6")
    a("s_lshl_b32 s52, s46, 15"); a("s_lshl_b32 s53, s48, 6"); a("s_add_u32 s52, s52, s53")
    a.wait(lds="all")
    for i in range(4):
        a(f"v_add_f32 v{32+i}, v{32+i}, v{36+i}")
        a(f"v_add_f32 v{40+i}, v{40+i}, v{44+i}")
    for i in range(4):
        a(f"v_add_f32 v{32+i}, v{32+i}, v{40+i}")
    a("v_cvt_pk_bf16_f32 v48, v32, v33")
    a("v_cvt_pk_bf16_f32 v49, v34, v35")
    a.vm("buffer_store_dwordx2 v[48:49], v6, s[36:39], s52 offen", "st")
    a.label("L2_done")
    a("s_endpgm")


def gen_k2b(a):
    a.raw(".globl oproj_kernel\n.p2align 8\n.type oproj_kernel,@function")
    a.label("oproj_kernel")
    a("s_cmp_ge_u32 s2, 256")
    a("s_cbranch_scc1 L2_done")
    a("s_load_dwordx2 s[14:15], s[0:1], 40")
    a("s_load_dwordx2 s[18:19], s[0:1], 56")
    a("s_and_b32 s44, s2, 7")
    a("s_lshr_b32 s45, s2, 3")
    a("s_and_b32 s46, s44, 3"); a("s_lshl_b32 s46, s46, 2"); a("s_and_b32 s47, s45, 3"); a("s_add_u32 s46, s46, s47")
    a("s_lshr_b32 s48, s44, 2"); a("s_lshl_b32 s48, s48, 3"); a("s_lshr_b32 s47, s45, 2"); a("s_add_u32 s48, s48, s47")
    a("v_lshrrev_b32 v1, 6, v0")
    a("v_and_b32 v2, 63, v0")
    a("v_lshlrev_b32 v3, 4, v2")
    a("v_lshl_add_u32 v4, v1, 15, v3")
    a("s_lshl_b32 s50, s48, 18"); a(f"s_add_u32 s50, s50, {WOF_BASE}")
    a("s_lshl_b32 s51, s46, 18")
    a("s_waitcnt lgkmcnt(0)")
    srd(a, 40, 18, 19, WS_BYTES)
    NB = 8
    NSET = 3
    def regA(set_, i): return set_ * 64 + i * 8
    def issue(bt):
        set_ = bt % NSET
        for half in range(NB // 4):
            a(f"s_add_u32 s{60+half*2}, s50, {(bt*NB+half*4)*1024}")
            a(f"s_add_u32 s{61+half*2}, s51, {(bt*NB+half*4)*1024}")
            for i in range(4):
                r = regA(set_, half * 4 + i)
                off = f" offset:{i*1024}" if i else ""
                a.vm(f"buffer_load_dwordx4 a[{r}:{r+3}], v4, s[40:43], s{60+half*2} offen{off}", f"b{bt}_{half*4+i}")
                a.vm(f"buffer_load_dwordx4 a[{r+4}:{r+7}], v4, s[40:43], s{61+half*2} offen{off}", f"b{bt}_{half*4+i}")
    nbt = 32 // NB
    for bt in range(3):
        issue(bt)
    srd(a, 36, 14, 15, 8 * 64 * 512 * 2)
    a("v_and_b32 v6, 31, v2")
    a("v_lshrrev_b32 v7, 5, v2")
    a("v_lshlrev_b32 v6, 10, v6")
    a("v_lshl_add_u32 v6, v7, 3, v6")
    a("v_lshrrev_b32 v7, 1, v1")
    a("v_lshl_add_u32 v6, v7, 4, v6")
    a("v_and_b32 v7, 1, v1")
    a("v_lshl_add_u32 v6, v7, 2, v6")
    a("s_lshl_b32 s52, s46, 15"); a("s_lshl_b32 s53, s48, 6"); a("s_add_u32 s52, s52, s53")
    a("v_lshlrev_b32 v8, 3, v2")
    a("v_lshl_add_u32 v5, v1, 12, v8")
    a("v_lshl_add_u32 v9, v1, 9, v8")
    for bt in range(nbt):
        set_ = bt % NSET
        for i in range(NB):
            a.wait(vm=f"b{bt}_{i}")
            r = regA(set_, i)
            c_ = "0" if (bt == 0 and i == 0) else "v[16:31]"
            a(f"v_mfma_f32_32x32x16_bf16 v[16:31], a[{r}:{r+3}], a[{r+4}:{r+7}], {c_}")
        if bt + 3 < nbt:
            issue(bt + 3)
    for p in range(8):
        a.lds(f"ds_write_b64 v5, v[{16+2*p}:{17+2*p}] offset:{p*512}", "w")
    a.wait(lds="all")
    a("s_barrier")
    for ws_ in range(8):
        a.lds(f"ds_read_b64 v[{32+2*ws_}:{33+2*ws_}], v9 offset:{ws_*4096}", "r")
    a.wait(lds="all")
    for i in range(2):
        a(f"v_add_f32 v{32+i}, v{32+i}, v{34+i}")
        a(f"v_add_f32 v{36+i}, v{36+i}, v{38+i}")
        a(f"v_add_f32 v{40+i}, v{40+i}, v{42+i}")
        a(f"v_add_f32 v{44+i}, v{44+i}, v{46+i}")
    for i in range(2):
        a(f"v_add_f32 v{32+i}, v{32+i}, v{36+i}")
        a(f"v_add_f32 v{40+i}, v{40+i}, v{44+i}")
    for i in range(2):
        a(f"v_add_f32 v{32+i}, v{32+i}, v{40+i}")
    a("v_cvt_pk_bf16_f32 v48, v32, v33")
    a.vm("buffer_store_dword v48, v6, s[36:39], s52 offen", "st")
    a.label("L2_done")
    a("s_endpgm")


def desc(name, vgpr, accum, sgpr=102):
    return f""".amdhsa_kernel {name}
  .amdhsa_next_free_vgpr {vgpr}
  .amdhsa_next_free_sgpr {sgpr}
  .amdhsa_accum_offset {accum}
  .amdhsa_group_segment_fixed_size 0
  .amdhsa_kernarg_size 64
  .amdhsa_user_sgpr_count 2
  .amdhsa_user_sgpr_kernarg_segment_ptr 1
  .amdhsa_system_sgpr_workgroup_id_x 1
.end_amdhsa_kernel
"""


def main():
    hdr = open("standalone__gqa_block_cached__near_ridge.s.ref").read().split("\n")
    hdr = [l for l in hdr if l.startswith(";") and "launch" not in l.lower()]
    txt = "\n".join(hdr) + "\n"
    txt += "; @launch kernel=attn_kernel grid=(256,1,1) block=(512,1,1) lds=163840\n"
    K2B = "--k2a" not in sys.argv
    if K2B:
        txt += "; @launch kernel=oproj_kernel grid=(256,1,1) block=(512,1,1) lds=32768\n"
    else:
        txt += "; @launch kernel=oproj_kernel grid=(256,1,1) block=(256,1,1) lds=16384\n"
    txt += '.amdgcn_target "amdgcn-amd-amdhsa--gfx950"\n.text\n'
    a1 = Asm(); gen_k1(a1)
    a2 = Asm(); (gen_k2b if K2B else gen_k2)(a2)
    txt += a1.text() + a2.text()
    txt += '.section .rodata,"a"\n.p2align 6\n' + desc("attn_kernel", 256, 144)
    txt += ".p2align 6\n" + (desc("oproj_kernel", 64 + 192, 64) if K2B else desc("oproj_kernel", 64 + 256, 64))
    open(OUT, "w").write(txt)
    print("k1 lines", len(a1.lines), "nops", a1.nops, " k2 lines", len(a2.lines), "nops", a2.nops)


main()
```

```python
import sys, math, struct
from asmlib import Asm

OUT = sys.argv[1] if len(sys.argv) > 1 and not sys.argv[1].startswith("--") else "standalone__gqa_block_cached__near_ridge.s"

STAMP = "--stamp" in sys.argv
PREFETCH = "--nopf" not in sys.argv
K2NOROT = True
NINIT = 6
for _a in sys.argv:
    if _a.startswith("--ninit="): NINIT = int(_a[8:])
PV_HEAD = 20
PV_PER = 6
PRIO = 0
DEFER = '--defer' in sys.argv
SMOOTH = 0
for _a in sys.argv:
    if _a.startswith('--smooth='): SMOOTH = int(_a[9:]); NINIT = SMOOTH
for _a in sys.argv:
    if _a.startswith("--pvhead="): PV_HEAD = int(_a[9:])
    if _a.startswith("--pvper="): PV_PER = int(_a[8:])
    if _a.startswith("--prio="): PRIO = int(_a[7:])
K2MAP = 2
for _a in sys.argv:
    if _a.startswith("--k2map="): K2MAP = int(_a[8:])
WOF_BASE = 4 << 20
WS_BYTES = 8 << 20

def f32bits(x):
    return struct.unpack("<I", struct.pack("<f", x))[0]

SCALE_LOG2E = (128 ** -0.5) * math.log2(math.e)

QS = [i * 24576 for i in range(6)]
QBUF = [0, 1, 2, 3, 4, 5, 0, 1]
KU = [[18, 19, 6, 7, 8, 9, 10, 11], [12, 13, 14, 15, 16, 17, 0, 1]]
QX = 16384
MX = QX + 16384
LX = 18 * 8192


def slot_base(kb):
    return (KV_EARLY + kb * 8192) if kb < 2 else (KV_LATE + (kb - 2) * 8192)


def srd(a, d, lo, hi, nbytes):
    a(f"s_mov_b32 s{d}, s{lo}")
    a(f"s_mov_b32 s{d+1}, s{hi}")
    if isinstance(nbytes, int):
        a(f"s_mov_b32 s{d+2}, {nbytes}")
    else:
        a(f"s_mov_b32 s{d+2}, s{nbytes[1:]}")
    a(f"s_mov_b32 s{d+3}, 0x00020000")


_stamps = []
STAMPSET = None
for _arg in sys.argv:
    if _arg.startswith("--stamps="):
        STAMPSET = _arg[9:].split(",")
def stamp(a, name):
    if not STAMP or (STAMPSET is not None and name not in STAMPSET):
        return
    i = len(_stamps)
    _stamps.append(name)
    a.wait(lds="all")
    a("s_memtime s[78:79]")
    a("s_waitcnt lgkmcnt(0)")
    a(f"s_mov_b32 s{80+i}, s78")

def dump_stamps(a):
    if not STAMP:
        return
    a("s_cmp_lg_u32 s2, 37")
    a("s_cbranch_scc1 L1_nostamp")
    a("s_and_b32 s59, s49, 3")
    a("s_cmp_lg_u32 s59, 0")
    a("s_cbranch_scc1 L1_nostamp")
    srd(a, 20, 16, 17, 256)
    a("s_lshl_b32 s59, s49, 5")
    for i in range(len(_stamps)):
        a(f"v_mov_b32 v3, s{80+i}")
        a(f"v_mov_b32 v4, {4*i}")
        a(f"buffer_store_dword v3, v4, s[20:23], s59 offen")
        a("s_waitcnt vmcnt(0)")
    a.label("L1_nostamp")
    print("stamps:", _stamps)

def gen_k1(a):
    a.raw(".globl attn_kernel\n.p2align 8\n.type attn_kernel,@function")
    a.label("attn_kernel")
    a("s_cmp_ge_u32 s2, 256")
    a("s_cbranch_scc1 L1_done")
    a("s_load_dwordx16 s[4:19], s[0:1], 0")
    a("s_and_b32 s44, s2, 7")
    a("s_lshr_b32 s45, s2, 3")
    a("s_lshr_b32 s46, s45, 2")
    a("s_and_b32 s47, s45, 3")
    a("s_lshl_b32 s48, s44, 2")
    a("s_add_u32 s48, s48, s47")
    a("v_lshrrev_b32 v1, 6, v0")
    a("v_and_b32 v2, 63, v0")
    a("v_readfirstlane_b32 s49, v1")
    a("v_and_b32 v50, 3, v1")
    a("v_lshrrev_b32 v51, 2, v1")
    a("v_lshrrev_b32 v3, 4, v2")
    a("v_and_b32 v4, 15, v2")
    a("v_lshlrev_b32 v5, 2, v3")
    a("v_xor_b32 v5, v4, v5")
    a("v_lshlrev_b32 v5, 4, v5")
    a("v_lshl_add_u32 v8, v3, 13, v5")
    a("v_lshl_add_u32 v9, v3, 8, v5")
    a("v_lshl_add_u32 v6, v50, 2, v3")
    a("v_xor_b32 v6, v4, v6")
    a("v_lshlrev_b32 v6, 4, v6")
    a("v_lshl_add_u32 v10, v3, 8, v6")
    a("v_lshrrev_b32 v6, 3, v2")
    a("v_and_b32 v7, 7, v2")
    a("v_and_b32 v36, 1, v1")
    a("v_lshl_add_u32 v36, v36, 2, v3")
    a("v_and_b32 v36, 7, v36")
    a("v_xor_b32 v36, v7, v36")
    a("v_lshlrev_b32 v36, 4, v36")
    a("v_lshl_add_u32 v14, v6, 10, v36")
    a("v_lshlrev_b32 v16, 4, v7")
    a("v_lshl_add_u32 v16, v6, 10, v16")
    a("v_lshl_add_u32 v16, v1, 7, v16")
    a("v_lshrrev_b32 v36, 5, v2")
    a("v_and_b32 v37, 31, v2")
    a("v_and_b32 v38, 1, v3")
    a("v_lshrrev_b32 v39, 2, v2")
    a("v_and_b32 v39, 3, v39")
    a("v_and_b32 v40, 3, v2")
    a("v_lshrrev_b32 v41, 1, v40")
    a("v_and_b32 v42, 1, v40")
    a("v_lshlrev_b32 v43, 2, v39")
    a("v_lshl_add_u32 v43, v38, 1, v43")
    a("v_lshl_add_u32 v48, v36, 3, v39")
    a("v_lshlrev_b32 v47, 7, v48")
    a("v_lshl_add_u32 v47, v38, 5, v47")
    a("v_lshl_add_u32 v47, v40, 3, v47")
    a("v_lshlrev_b32 v48, 8, v48")
    a("v_add_u32 v49, v43, v41")
    a("v_lshl_add_u32 v48, v49, 4, v48")
    a("v_lshl_add_u32 v48, v42, 3, v48")
    a("v_lshlrev_b32 v49, 6, v50")
    a("v_xor_b32 v17, v48, v49")
    a("v_lshl_add_u32 v48, v36, 2, v39")
    a("v_lshlrev_b32 v48, 8, v48")
    a("v_add_u32 v52, v43, v42")
    a("v_lshl_add_u32 v48, v52, 4, v48")
    a("v_lshl_add_u32 v48, v41, 3, v48")
    a("v_xor_b32 v30, v48, v49")
    a(f"v_add_u32 v31, 65536, v30")
    a(f"v_add_u32 v32, 131072, v30")
    a("v_lshrrev_b32 v48, 1, v37")
    a("v_and_b32 v48, 7, v48")
    a("v_xor_b32 v48, v36, v48")
    a("v_lshlrev_b32 v48, 4, v48")
    a("v_lshl_add_u32 v48, v37, 7, v48")
    a("v_lshl_add_u32 v48, v51, 12, v48")
    for kc in range(4):
        a(f"v_xor_b32 v{18+kc}, {kc<<5}, v48")
    a("v_and_b32 v48, 15, v37")
    a("v_xor_b32 v48, v36, v48")
    a("v_lshlrev_b32 v48, 4, v48")
    a("v_lshl_add_u32 v48, v37, 8, v48")
    for c in range(8):
        a(f"v_xor_b32 v{22+c}, {c<<5}, v48")
    a("v_and_b32 v48, 15, v37")
    a("v_lshlrev_b32 v49, 2, v50")
    a("v_xor_b32 v48, v48, v49")
    a("v_lshlrev_b32 v48, 4, v48")
    a("v_lshl_add_u32 v48, v37, 8, v48")
    a("v_lshl_add_u32 v48, v51, 13, v48")
    a("v_lshl_add_u32 v34, v36, 3, v48")
    a("v_lshlrev_b32 v35, 4, v2")
    a("v_mov_b32 v46, v37")
    a("v_mov_b32 v45, v51")
    a("s_waitcnt lgkmcnt(0)")
    a("s_lshl_b32 s50, s46, 16")
    a("s_add_u32 s4, s4, s50"); a("s_addc_u32 s5, s5, 0")
    srd(a, 20, 4, 5, 65536)
    a("s_lshl_b32 s50, s46, 20"); a("s_lshl_b32 s51, s44, 17"); a("s_add_u32 s50, s50, s51")
    a("s_add_u32 s6, s6, s50"); a("s_addc_u32 s7, s7, 0")
    srd(a, 24, 6, 7, 131072)
    a("s_add_u32 s8, s8, s50"); a("s_addc_u32 s9, s9, 0")
    srd(a, 28, 8, 9, 131072)
    a("s_lshl_b32 s50, s48, 8")
    a("s_add_u32 s10, s10, s50"); a("s_addc_u32 s11, s11, 0")
    a(f"s_sub_u32 s51, {512*4096*2}, s50")
    srd(a, 32, 10, 11, "s51")
    a("s_lshl_b32 s50, s2, 14")
    a("s_add_u32 s12, s12, s50"); a("s_addc_u32 s13, s13, 0")
    srd(a, 36, 12, 13, 16384)
    srd(a, 40, 18, 19, WS_BYTES)
    a("s_lshl_b32 s52, s49, 10")
    a("s_lshl_b32 s53, s49, 15")
    a("s_lshl_b32 s54, s49, 11")
    a("s_lshl_b32 s55, s49, 13")
    a("s_lshl_b32 s56, s49, 14")
    a(f"s_mov_b32 s57, {f32bits(SCALE_LOG2E)}")
    rot = [0]
    NT = ""
    a("s_lshl_b32 s58, s47, 1")
    a("s_add_u32 s58, s58, s46")
    if "--norot" in sys.argv:
        a("s_mov_b32 s58, 0")
    a("s_mov_b32 s68, 0")
    a("s_mov_b32 s69, 8192")

    def sreg_next():
        r = 60 + rot[0] % 8
        rot[0] += 1
        return r

    def q_items(s):
        buf = QS[QBUF[s]]
        items = []
        def pre():
            a(f"s_add_u32 s59, s58, {s}")
            a("s_and_b32 s59, s59, 7")
            a("s_lshl_b32 s74, s59, 19")
            a("s_add_u32 s74, s74, s53")
            a("s_lshl_b32 s75, s59, 7")
            a("s_add_u32 s75, s75, s55")
        for j in range(2):
            def f(j=j):
                if j == 0:
                    pre()
                r = sreg_next()
                a(f"s_add_u32 m0, s52, {buf + j*8192}")
                a(f"s_add_u32 s{r}, s74, {j*262144}")
                a.vm(f"buffer_load_dwordx4 v8, s[32:35], s{r} offen{NT} lds", f"Q{s}")
            items.append(f)
        def f():
            a(f"s_add_u32 m0, s52, {buf + 16384}")
            a.vm(f"buffer_load_dwordx4 v14, s[20:23], s75 offen lds", f"Q{s}")
        items.append(f)
        return items

    a("s_add_u32 s59, s49, 18"); a("s_add_u32 s70, s49, 4")
    a("s_cmp_lt_u32 s49, 2"); a("s_cselect_b32 s70, s59, s70"); a("s_lshl_b32 s70, s70, 13")
    a("s_add_u32 s59, s49, 12"); a("s_sub_u32 s71, s49, 6")
    a("s_cmp_lt_u32 s49, 6"); a("s_cselect_b32 s71, s59, s71"); a("s_lshl_b32 s71, s71, 13")
    a("s_and_b32 s72, s47, 1")
    if "--norot" in sys.argv:
        a("s_mov_b32 s72, 0")
    a("s_lshl_b32 s72, s72, 13"); a("s_xor_b32 s73, s72, 8192")
    a("s_add_u32 s72, s72, s52"); a("s_add_u32 s73, s73, s52")

    def k_item(kb, ws_):
        def f():
            r = sreg_next()
            a(f"s_add_u32 m0, s52, {KU[kb][ws_] * 8192}")
            a(f"s_add_u32 s{r}, s{72+kb}, {ws_ * 16384}")
            a.vm(f"buffer_load_dwordx4 v10, s[24:27], s{r} offen{NT} lds", f"K{kb}")
        return f

    def v_items(kb):
        items = []
        for half in range(2):
            for i in range(4):
                def f(half=half, i=i):
                    if i == 0:
                        a(f"s_sub_u32 s76, s{72+kb}, s52")
                        a("s_add_u32 s76, s76, s56")
                        if half:
                            a("s_add_u32 s76, s76, 4096")
                    a(f"s_add_u32 m0, s{70+kb}, {half*4096}")
                    off = f" offset:{i*1024}" if i else ""
                    a.vm(f"buffer_load_dwordx4 v9, s[28:31], s76 offen{off}{NT} lds", f"V{kb}")
                items.append(f)
        return items

    def wo_items():
        return [lambda i=i: a.vm(f"buffer_load_dwordx4 v[{56+4*i}:{59+4*i}], v16, s[36:39], s{68+i} offen{NT}", "WO")
                for i in range(2)]

    def interleave(main, side, every=1, per=1, first=0):
        side = list(side)
        for i, m in enumerate(main):
            m()
            if i >= first and (i - first) % every == 0:
                for _ in range(per):
                    if side:
                        side.pop(0)()
        for f in side:
            f()

    if PRIO:
        a("s_cmp_ge_u32 s49, 4")
        a("s_cbranch_scc0 L1_prio" if PRIO == 1 else "s_cbranch_scc1 L1_prio")
        a("s_setprio 1")
        a.label("L1_prio")
    if STAMP:
        a("s_memrealtime s[96:97]")
        a("s_waitcnt lgkmcnt(0)")
    stamp(a, "start")
    for s in range(NINIT):
        for f in q_items(s):
            f()
    late0 = []
    for s in range(NINIT, 6):
        late0 += q_items(s)
    late0 += [k_item(0, 0), k_item(0, 1)]
    if NINIT == 6:
        for f in late0:
            f()
        late0 = []

    QACC = 0
    stamp(a, "issued")
    def qreads(s):
        buf = QS[QBUF[s]]
        fb = 64 + 32 * (s & 1)
        ab = 36 + 5 * (s & 1) if False else 36
        a(f"v_add_u32 v36, {buf}, v17")
        for kc in range(4):
            a(f"v_add_u32 v{37+kc}, {buf + 16384}, v{18+kc}")
        for kc in range(4):
            a.lds(f"ds_read_b64_tr_b16 v[{fb+4*kc}:{fb+1+4*kc}], v36 offset:{kc*4096}", f"f{s}_{kc}")
            a.lds(f"ds_read_b64_tr_b16 v[{fb+2+4*kc}:{fb+3+4*kc}], v36 offset:{kc*4096+1024}", f"f{s}_{kc}")
            a.lds(f"ds_read_b128 v[{fb+16+4*kc}:{fb+19+4*kc}], v{37+kc}", f"f{s}_{kc}")
    a.wait(vm="Q0")
    a("s_barrier")
    stamp(a, "Qs0")
    qreads(0)
    for s in range(8):
        a.comment(f"---- Q stage {s}")
        fb = 64 + 32 * (s & 1)
        KI = lambda i_: k_item(i_ >> 3, i_ & 7)
        if SMOOTH == 3:
            side = {0: q_items(3) + q_items(4), 1: q_items(5) + q_items(6), 2: q_items(7) + wo_items(),
                    3: [KI(i_) for i_ in range(0, 5)], 4: [KI(i_) for i_ in range(5, 10)],
                    5: [KI(i_) for i_ in range(10, 14)], 6: [KI(i_) for i_ in (14, 15)], 7: []}[s]
        elif SMOOTH == 4:
            side = {0: q_items(4) + q_items(5), 1: q_items(6) + q_items(7), 2: wo_items() + [KI(i_) for i_ in range(0, 4)],
                    3: [KI(i_) for i_ in range(4, 8)], 4: [KI(i_) for i_ in range(8, 11)],
                    5: [KI(i_) for i_ in range(11, 14)], 6: [KI(i_) for i_ in (14, 15)], 7: []}[s]
        elif DEFER:
            side = {0: late0 + q_items(6) + wo_items(), 1: q_items(7),
                2: [k_item(0, w_) for w_ in (2, 3, 4)], 3: [k_item(0, w_) for w_ in (5, 6, 7)],
                4: [], 5: [], 6: [k_item(1, 0)], 7: [k_item(1, 1), k_item(1, 2)]}[s]
        else:
            side = {0: late0 + q_items(6) + wo_items(), 1: q_items(7),
                2: [k_item(0, w_) for w_ in (2, 3, 4)], 3: [k_item(0, w_) for w_ in (5, 6, 7)],
                4: [k_item(1, w_) for w_ in (0, 1, 2)], 5: [k_item(1, w_) for w_ in (3, 4, 5)],
                6: [k_item(1, w_) for w_ in (6, 7)], 7: []}[s]
        a.wait(lds="all")
        def mf(kc):
            acc = f"a[{QACC}:{QACC+15}]"
            c_ = "0" if (s == 0 and kc == 0) else acc
            a(f"v_mfma_f32_32x32x16_bf16 {acc}, v[{fb+4*kc}:{fb+3+4*kc}], v[{fb+16+4*kc}:{fb+19+4*kc}], {c_}")
        mf(0)
        if s < 7:
            a.wait(vm=f"Q{s+1}")
        a("s_barrier")
        stamp(a, f"Qs{s+1}")
        if s < 7:
            qreads(s + 1)
        interleave([lambda kc=kc: mf(kc) for kc in range(1, 4)], side, per=2)
    stamp(a, "Qdone")
    for gg in range(4):
        b0 = 64 + gg * 8
        for i in range(4):
            a(f"v_accvgpr_read_b32 v{b0+i}, a{QACC+4*gg+i}")
        a(f"v_cvt_pk_bf16_f32 v{b0+4}, v{b0}, v{b0+1}")
        a(f"v_cvt_pk_bf16_f32 v{b0+5}, v{b0+2}, v{b0+3}")
        a(f"v_xor_b32 v{b0+6}, {gg<<4}, v34")
        a(f"v_add_u32 v{b0+6}, {QX}, v{b0+6}")
        a.lds(f"ds_write_b64 v{b0+6}, v[{b0+4}:{b0+5}]", "qw")
        if DEFER and gg in (0, 2):
            k_item(1, 3 + gg // 2)()
    for c in range(8):
        a(f"v_add_u32 v{36+c}, {QX}, v{22+c}")
    a.wait(lds="all", vm="K0")
    stamp(a, "Qx w")
    a("s_barrier")
    stamp(a, "Qx b2")
    QB = 16
    for t in range(2):
        for c in range(8):
            r = QB + (t * 8 + c) * 4
            a.lds(f"ds_read_b128 a[{r}:{r+3}], v{36+c} offset:{t*8192}", f"qr{t}")
        if t == 0:
            a.wait(lds="all")

    stamp(a, "Qx done")
    def S(kb, t, r):
        return 64 + (kb * 2 + t) * 16 + r
    def kfrag(kb, c):
        return f"v[{96+4*c}:{99+4*c}]" if kb == 0 else f"a[{80+4*c}:{83+4*c}]"
    def kreads(kb):
        for c in range(8):
            a(f"v_add_u32 v{36+c}, s{70+kb}, v{22+c}")
        for c in range(8):
            a.lds(f"ds_read_b128 {kfrag(kb,c)}, v{36+c}", f"k{kb}")
    a.wait(lds="all")
    kreads(0)
    for kb in range(2):
        a.wait(lds=f"k{kb}")
        main = []
        for c in range(8):
            for t in range(2):
                def f(c=c, t=t):
                    sacc = f"v[{S(kb,t,0)}:{S(kb,t,15)}]"
                    r = QB + (t * 8 + c) * 4
                    c_ = "0" if c == 0 else sacc
                    a(f"v_mfma_f32_32x32x16_bf16 {sacc}, {kfrag(kb,c)}, a[{r}:{r+3}], {c_}")
                main.append(f)
        if kb == 1: stamp(a, "S0 done")
        if kb == 0:
            def kb1():
                stamp(a, "K1 pre")
                a.wait(vm="K1")
                stamp(a, "K1 w")
                a("s_barrier")
                stamp(a, "K1 b")
                kreads(1)
            vq = v_items(0)
            if DEFER:
                interleave(main[:14], [k_item(1, 5), k_item(1, 6), k_item(1, 7), vq.pop(0), vq.pop(0)], every=3, first=0)
                kb1()
                interleave(main[14:], [], every=4, first=1)
            else:
                interleave(main[:8], [vq.pop(0), vq.pop(0)], every=4, first=1)
                kb1()
                interleave(main[8:], [vq.pop(0), vq.pop(0)], every=4, first=1)
        else:
            if DEFER:
                interleave(main, [vq.pop(0) for _ in range(5)], every=3, first=1)
                vq = vq + v_items(1)
            else:
                interleave(main, vq, every=4, first=1)
                vq = v_items(1)

    stamp(a, "S done")
    lists = [[S(kb, t, r) for kb in range(2) for r in range(16)] for t in range(2)]
    for t in range(2):
        for ch in range(2):
            L = lists[t][16 * ch:16 * ch + 16]
            a(f"v_max3_f32 v{48+2*t+ch}, v{L[0]}, v{L[1]}, v{L[2]}")
    for i in range(3, 15, 2):
        for t in range(2):
            for ch in range(2):
                L = lists[t][16 * ch:16 * ch + 16]
                a(f"v_max3_f32 v{48+2*t+ch}, v{48+2*t+ch}, v{L[i]}, v{L[i+1]}")
        if i in (3, 11):
            vq.pop(0)()
    for t in range(2):
        L0 = lists[t][15]; L1 = lists[t][31]
        a(f"v_max3_f32 v{48+2*t}, v{48+2*t}, v{L0}, v{L1}")
        a(f"v_max_f32 v{48+2*t}, v{48+2*t}, v{49+2*t}")
    for t in range(2):
        a(f"v_mov_b32 v{49+2*t}, v{48+2*t}")
    a("v_lshlrev_b32 v36, 5, v46")
    a(f"v_add_u32 v36, {MX}, v36")
    a("v_lshl_add_u32 v37, v1, 2, v36")
    for t in range(2):
        a(f"v_permlane32_swap_b32 v{48+2*t}, v{49+2*t}")
    for t in range(2):
        a(f"v_max_f32 v{48+2*t}, v{48+2*t}, v{49+2*t}")
    for t in range(2):
        a.lds(f"ds_write_b32 v37, v{48+2*t} offset:{t*1024}", "mw")
    a("v_add_u32 v38, s54, v35")
    a(f"v_add_u32 v38, {QX}, v38")
    stamp(a, "max pre")
    a.wait(lds="all", vm="WO")
    stamp(a, "max wo")
    a("s_barrier")
    stamp(a, "max b")
    for t in range(2):
        for hh in range(2):
            r = 128 + 8 * t + 4 * hh
            a.lds(f"ds_read_b128 v[{r}:{r+3}], v36 offset:{t*1024 + hh*16}", "mr")
    for i in range(2):
        a.lds(f"ds_write_b128 v38, v[{56+4*i}:{59+4*i}] offset:{i*1024}", "wow")
    a("v_add_u32 v39, s54, v47")
    a(f"v_add_u32 v39, {QX}, v39")
    a("s_lshl_b32 s58, s49, 19")
    a("s_lshl_b32 s59, s2, 10")
    a("s_add_u32 s58, s58, s59")
    for t in range(2):
        a(f"v_mov_b32 v{50+2*t}, 0")
        a(f"v_mov_b32 v{51+2*t}, 0")
    a("v_lshl_add_u32 v42, v45, 10, v35")
    a(f"v_add_u32 v42, {QX}, v42")
    a.wait(lds="mr")
    for t in range(2):
        r = 128 + 8 * t
        a(f"v_max3_f32 v{r}, v{r}, v{r+1}, v{r+2}")
        a(f"v_max3_f32 v{r+3}, v{r+3}, v{r+4}, v{r+5}")
        a(f"v_max3_f32 v{r}, v{r}, v{r+6}, v{r+7}")
        a(f"v_max_f32 v{r}, v{r}, v{r+3}")
        a(f"v_mul_f32 v{48+t}, s57, v{r}")
    stamp(a, "max done")

    def exp_items(j):
        kb, u = j >> 1, j & 1
        it = []
        for t in range(2):
            R = [S(kb, t, 8 * u + r) for r in range(8)]
            for r in R:
                it.append(lambda t=t, r=r: a(f"v_fma_f32 v{r}, v{r}, s57, -v{48+t}"))
        for t in range(2):
            R = [S(kb, t, 8 * u + r) for r in range(8)]
            for r in R:
                it.append(lambda t=t, r=r: a(f"v_exp_f32 v{r}, v{r}"))
        for t in range(2):
            R = [S(kb, t, 8 * u + r) for r in range(8)]
            for r in R:
                it.append(lambda t=t, r=r: a(f"v_add_f32 v{50+2*t+(r&1)}, v{50+2*t+(r&1)}, v{r}"))
            for i in range(4):
                it.append(lambda t=t, i=i, R=R: a(f"v_cvt_pk_bf16_f32 v{R[i]}, v{R[2*i]}, v{R[2*i+1]}"))
        return it

    def pv_parts(j):
        kb, u = j >> 1, j & 1
        def rd(ws_):
            fb = 16 + 8 * ws_
            ad = KU[kb][ws_] * 8192 + u * 4096
            vb = 30 + (ad >> 16)
            ad &= 65535
            a.lds(f"ds_read_b64_tr_b16 a[{fb}:{fb+1}], v{vb} offset:{ad}", f"p{ws_}")
            a.lds(f"ds_read_b64_tr_b16 a[{fb+2}:{fb+3}], v{vb} offset:{ad + 2048}", f"p{ws_}")
            a.lds(f"ds_read_b128 a[{fb+4}:{fb+7}], v42 offset:{(j&1)*16384 + ws_*2048}", f"p{ws_}")
        def mf(ws_):
            a.wait(lds=f"p{ws_}")
            if ws_ + 4 < 8:
                rd(ws_ + 4)
            fb = 16 + 8 * ws_
            c_ = "0" if (j == 0 and ws_ == 0) else "a[0:15]"
            a(f"v_mfma_f32_32x32x16_bf16 a[0:15], a[{fb}:{fb+3}], a[{fb+4}:{fb+7}], {c_}")
        return rd, mf

    def p_write(j):
        kb, u = j >> 1, j & 1
        for t in range(2):
            p = S(kb, t, 8 * u)
            a.lds(f"ds_write_b128 v38, v[{p}:{p+3}] offset:{(j&1)*16384 + t*1024}", "pw")

    def l_items():
        def f():
            for t in range(2):
                a(f"v_add_f32 v{50+2*t}, v{50+2*t}, v{51+2*t}")
                a(f"v_mov_b32 v{51+2*t}, v{50+2*t}")
            a(f"v_add_u32 v37, {LX - MX}, v37")
            for t in range(2):
                a(f"v_permlane32_swap_b32 v{50+2*t}, v{51+2*t}")
            for t in range(2):
                a(f"v_add_f32 v{50+2*t}, v{50+2*t}, v{51+2*t}")
            for t in range(2):
                a.lds(f"ds_write_b32 v37, v{50+2*t} offset:{t*1024}", "lw")
        return f

    ex = exp_items(0)
    vq.pop(0)()
    for f in ex[:16]:
        f()
    vq.pop(0)()
    a.wait(lds="wow")
    for i in range(2):
        a.lds(f"ds_read_b64_tr_b16 v[{56+4*i}:{57+4*i}], v39 offset:{i*64}", "wo")
        a.lds(f"ds_read_b64_tr_b16 v[{58+4*i}:{59+4*i}], v39 offset:{i*64+512}", "wo")
    for f in ex[16:36]:
        f()
    vq.pop(0)()
    for f in ex[36:]:
        f()
    a.wait(lds="wo")
    p_write(0)
    for i in range(2):
        a(f"s_add_u32 s{68+i}, s58, {WOF_BASE + i * 262144}")
        a.vm(f"buffer_store_dwordx4 v[{56+4*i}:{59+4*i}], v35, s[40:43], s{68+i} offen sc0 sc1", "st")
    stamp(a, "exp0")
    a.wait(lds="all", vm="V0")
    a("s_barrier")
    stamp(a, "B0")
    for j in range(1, 4):
        rd, mf = pv_parts(j - 1)
        ex = exp_items(j)
        for q_ in range(4):
            rd(q_)
        for f in ex[:PV_HEAD]:
            f()
        ex = ex[PV_HEAD:]
        done = False
        for ws_ in range(8):
            mf(ws_)
            if vq and ws_ % 3 == 0:
                vq.pop(0)()
            for _ in range(PV_PER):
                if ex:
                    ex.pop(0)()
            if not ex and not done:
                done = True
                p_write(j)
                if j == 3:
                    l_items()()
        assert done
        if j == 1: stamp(a, "pv0exp1")
        stamp(a, f"e{j} pre")
        a.wait(lds="all", vm=("V1" if j == 2 else None))
        stamp(a, f"e{j} w")
        a("s_barrier")
        stamp(a, f"e{j} b")
    stamp(a, "exp done")
    a(f"v_add_u32 v36, {LX - MX}, v36")
    a("v_lshl_add_u32 v36, v45, 10, v36")
    for hh in range(2):
        a.lds(f"ds_read_b128 v[{128+4*hh}:{131+4*hh}], v36 offset:{hh*16}", "lr")
    rd, mf = pv_parts(3)
    for q_ in range(4):
        rd(q_)
    a("s_lshl_b32 s58, s46, 19"); a("s_lshl_b32 s59, s48, 13"); a("s_add_u32 s58, s58, s59")
    a("s_and_b32 s59, s49, 3"); a("s_lshl_b32 s59, s59, 11"); a("s_add_u32 s58, s58, s59")
    a("s_lshr_b32 s59, s49, 2"); a("s_lshl_b32 s59, s59, 18"); a("s_add_u32 s58, s58, s59")
    def lfin():
        for i in range(4):
            a(f"v_add_f32 v{128+i}, v{128+i}, v{132+i}")
        a("v_add_f32 v128, v128, v129")
        a("v_add_f32 v130, v130, v131")
        a("v_add_f32 v128, v128, v130")
        a("v_rcp_f32 v128, v128")
    rd, mf = pv_parts(3)
    for ws_ in range(8):
        mf(ws_)
        if ws_ == 1:
            lfin()
    stamp(a, "PV done")
    for r in range(16):
        a(f"v_accvgpr_read_b32 v{64+r}, a{r}")
    for r in range(16):
        a(f"v_mul_f32 v{64+r}, v{64+r}, v128")
    for i in range(8):
        a(f"v_cvt_pk_bf16_f32 v{80+i}, v{64+2*i}, v{65+2*i}")
    for e in range(2):
        r = 80 + 4 * e
        off = " offset:1024" if e else ""
        a.vm(f"buffer_store_dwordx4 v[{r}:{r+3}], v35, s[40:43], s58 offen{off} sc0 sc1", "st")
    a.wait(vm="all")
    stamp(a, "end")
    if STAMP:
        a("s_memrealtime s[98:99]")
        a("s_waitcnt lgkmcnt(0)")
        a("s_sub_u32 s96, s98, s96")
    dump_stamps(a)
    a.label("L1_done")
    a("s_endpgm")


def gen_k2(a):
    a.raw(".globl oproj_kernel\n.p2align 8\n.type oproj_kernel,@function")
    a.label("oproj_kernel")
    a("s_cmp_ge_u32 s2, 256")
    a("s_cbranch_scc1 L2_done")
    a("s_load_dwordx2 s[14:15], s[0:1], 40")
    a("s_load_dwordx2 s[18:19], s[0:1], 56")
    a("s_and_b32 s44, s2, 7")
    a("s_lshr_b32 s45, s2, 3")
    lm = K2MAP; ln = 5 - K2MAP
    mg = 4 - lm
    a(f"s_and_b32 s46, s44, {(1<<mg)-1}"); a(f"s_lshl_b32 s46, s46, {lm}"); a(f"s_and_b32 s47, s45, {(1<<lm)-1}"); a("s_add_u32 s46, s46, s47")
    a(f"s_lshr_b32 s48, s44, {mg}"); a(f"s_lshl_b32 s48, s48, {ln}"); a(f"s_lshr_b32 s47, s45, {lm}"); a("s_add_u32 s48, s48, s47")
    a("v_lshrrev_b32 v1, 6, v0")
    a("v_and_b32 v2, 63, v0")
    a("v_lshlrev_b32 v3, 4, v2")
    a("v_lshl_add_u32 v4, v1, 16, v3")
    a("s_waitcnt lgkmcnt(0)")
    srd(a, 40, 18, 19, WS_BYTES)
    srd(a, 36, 14, 15, 8 * 64 * 512 * 2)
    a("s_lshl_b32 s50, s48, 18"); a(f"s_add_u32 s50, s50, {WOF_BASE}")
    a("s_lshl_b32 s51, s46, 18")
    NB = 8
    NSET = 4
    def regA(set_, i): return set_ * 64 + i * 8
    a("s_and_b32 s54, s45, 3"); a("s_lshl_b32 s54, s54, 1"); a("s_lshr_b32 s55, s45, 2"); a("s_add_u32 s54, s54, s55")
    if K2NOROT:
        a("s_mov_b32 s54, 0")
    def issue(bt):
        set_ = bt % NSET
        a(f"s_add_u32 s56, s54, {bt}")
        a("s_and_b32 s56, s56, 7")
        a("s_lshl_b32 s56, s56, 13")
        a("s_add_u32 s57, s56, s50")
        a("s_add_u32 s58, s56, s51")
        for half in range(NB // 4):
            a(f"s_add_u32 s{60+half*2}, s57, {half*4096}")
            a(f"s_add_u32 s{61+half*2}, s58, {half*4096}")
            for i in range(4):
                r = regA(set_, half * 4 + i)
                off = f" offset:{i*1024}" if i else ""
                a.vm(f"buffer_load_dwordx4 a[{r}:{r+3}], v4, s[40:43], s{60+half*2} offen{off}", f"b{bt}_{half*4+i}")
                a.vm(f"buffer_load_dwordx4 a[{r+4}:{r+7}], v4, s[40:43], s{61+half*2} offen{off}", f"b{bt}_{half*4+i}")
    nbt = 64 // NB
    for bt in range(3):
        issue(bt)
    for bt in range(nbt):
        set_ = bt % NSET
        for i in range(NB):
            a.wait(vm=f"b{bt}_{i}")
            if i == 0 and bt + 3 < nbt:
                issue(bt + 3)
            r = regA(set_, i)
            c_ = "0" if (bt == 0 and i == 0) else "v[16:31]"
            a(f"v_mfma_f32_32x32x16_bf16 v[16:31], a[{r}:{r+3}], a[{r+4}:{r+7}], {c_}")
    a("v_lshl_add_u32 v5, v1, 12, v3")
    for g in range(4):
        a.lds(f"ds_write_b128 v5, v[{16+4*g}:{19+4*g}] offset:{g*1024}", "w")
    a.wait(lds="all")
    a("s_barrier")
    a("v_lshl_add_u32 v5, v1, 10, v3")
    for ws_ in range(4):
        a.lds(f"ds_read_b128 v[{32+4*ws_}:{35+4*ws_}], v5 offset:{ws_*4096}", "r")
    a("v_and_b32 v6, 31, v2")
    a("v_lshrrev_b32 v7, 5, v2")
    a("v_lshlrev_b32 v6, 10, v6")
    a("v_lshl_add_u32 v6, v7, 3, v6")
    a("v_lshl_add_u32 v6, v1, 4, v6")
    a("s_lshl_b32 s52, s46, 15"); a("s_lshl_b32 s53, s48, 6"); a("s_add_u32 s52, s52, s53")
    a.wait(lds="all")
    for i in range(4):
        a(f"v_add_f32 v{32+i}, v{32+i}, v{36+i}")
        a(f"v_add_f32 v{40+i}, v{40+i}, v{44+i}")
    for i in range(4):
        a(f"v_add_f32 v{32+i}, v{32+i}, v{40+i}")
    a("v_cvt_pk_bf16_f32 v48, v32, v33")
    a("v_cvt_pk_bf16_f32 v49, v34, v35")
    a.vm("buffer_store_dwordx2 v[48:49], v6, s[36:39], s52 offen", "st")
    a.label("L2_done")
    a("s_endpgm")


def gen_k2b(a):
    a.raw(".globl oproj_kernel\n.p2align 8\n.type oproj_kernel,@function")
    a.label("oproj_kernel")
    a("s_cmp_ge_u32 s2, 256")
    a("s_cbranch_scc1 L2_done")
    a("s_load_dwordx2 s[14:15], s[0:1], 40")
    a("s_load_dwordx2 s[18:19], s[0:1], 56")
    a("s_and_b32 s44, s2, 7")
    a("s_lshr_b32 s45, s2, 3")
    a("s_and_b32 s46, s44, 3"); a("s_lshl_b32 s46, s46, 2"); a("s_and_b32 s47, s45, 3"); a("s_add_u32 s46, s46, s47")
    a("s_lshr_b32 s48, s44, 2"); a("s_lshl_b32 s48, s48, 3"); a("s_lshr_b32 s47, s45, 2"); a("s_add_u32 s48, s48, s47")
    a("v_lshrrev_b32 v1, 6, v0")
    a("v_and_b32 v2, 63, v0")
    a("v_lshlrev_b32 v3, 4, v2")
    a("v_lshl_add_u32 v4, v1, 15, v3")
    a("s_lshl_b32 s50, s48, 18"); a(f"s_add_u32 s50, s50, {WOF_BASE}")
    a("s_lshl_b32 s51, s46, 18")
    a("s_waitcnt lgkmcnt(0)")
    srd(a, 40, 18, 19, WS_BYTES)
    NB = 8
    NSET = 3
    def regA(set_, i): return set_ * 64 + i * 8
    def issue(bt):
        set_ = bt % NSET
        for half in range(NB // 4):
            a(f"s_add_u32 s{60+half*2}, s50, {(bt*NB+half*4)*1024}")
            a(f"s_add_u32 s{61+half*2}, s51, {(bt*NB+half*4)*1024}")
            for i in range(4):
                r = regA(set_, half * 4 + i)
                off = f" offset:{i*1024}" if i else ""
                a.vm(f"buffer_load_dwordx4 a[{r}:{r+3}], v4, s[40:43], s{60+half*2} offen{off}", f"b{bt}_{half*4+i}")
                a.vm(f"buffer_load_dwordx4 a[{r+4}:{r+7}], v4, s[40:43], s{61+half*2} offen{off}", f"b{bt}_{half*4+i}")
    nbt = 32 // NB
    for bt in range(3):
        issue(bt)
    srd(a, 36, 14, 15, 8 * 64 * 512 * 2)
    a("v_and_b32 v6, 31, v2")
    a("v_lshrrev_b32 v7, 5, v2")
    a("v_lshlrev_b32 v6, 10, v6")
    a("v_lshl_add_u32 v6, v7, 3, v6")
    a("v_lshrrev_b32 v7, 1, v1")
    a("v_lshl_add_u32 v6, v7, 4, v6")
    a("v_and_b32 v7, 1, v1")
    a("v_lshl_add_u32 v6, v7, 2, v6")
    a("s_lshl_b32 s52, s46, 15"); a("s_lshl_b32 s53, s48, 6"); a("s_add_u32 s52, s52, s53")
    a("v_lshlrev_b32 v8, 3, v2")
    a("v_lshl_add_u32 v5, v1, 12, v8")
    a("v_lshl_add_u32 v9, v1, 9, v8")
    for bt in range(nbt):
        set_ = bt % NSET
        for i in range(NB):
            a.wait(vm=f"b{bt}_{i}")
            r = regA(set_, i)
            c_ = "0" if (bt == 0 and i == 0) else "v[16:31]"
            a(f"v_mfma_f32_32x32x16_bf16 v[16:31], a[{r}:{r+3}], a[{r+4}:{r+7}], {c_}")
        if bt + 3 < nbt:
            issue(bt + 3)
    for p in range(8):
        a.lds(f"ds_write_b64 v5, v[{16+2*p}:{17+2*p}] offset:{p*512}", "w")
    a.wait(lds="all")
    a("s_barrier")
    for ws_ in range(8):
        a.lds(f"ds_read_b64 v[{32+2*ws_}:{33+2*ws_}], v9 offset:{ws_*4096}", "r")
    a.wait(lds="all")
    for i in range(2):
        a(f"v_add_f32 v{32+i}, v{32+i}, v{34+i}")
        a(f"v_add_f32 v{36+i}, v{36+i}, v{38+i}")
        a(f"v_add_f32 v{40+i}, v{40+i}, v{42+i}")
        a(f"v_add_f32 v{44+i}, v{44+i}, v{46+i}")
    for i in range(2):
        a(f"v_add_f32 v{32+i}, v{32+i}, v{36+i}")
        a(f"v_add_f32 v{40+i}, v{40+i}, v{44+i}")
    for i in range(2):
        a(f"v_add_f32 v{32+i}, v{32+i}, v{40+i}")
    a("v_cvt_pk_bf16_f32 v48, v32, v33")
    a.vm("buffer_store_dword v48, v6, s[36:39], s52 offen", "st")
    a.label("L2_done")
    a("s_endpgm")


def desc(name, vgpr, accum, sgpr=102):
    return f""".amdhsa_kernel {name}
  .amdhsa_next_free_vgpr {vgpr}
  .amdhsa_next_free_sgpr {sgpr}
  .amdhsa_accum_offset {accum}
  .amdhsa_group_segment_fixed_size 0
  .amdhsa_kernarg_size 64
  .amdhsa_user_sgpr_count 2
  .amdhsa_user_sgpr_kernarg_segment_ptr 1
  .amdhsa_system_sgpr_workgroup_id_x 1
.end_amdhsa_kernel
"""


def main():
    hdr = open("standalone__gqa_block_cached__near_ridge.s.ref").read().split("\n")
    hdr = [l for l in hdr if l.startswith(";") and "launch" not in l.lower()]
    txt = "\n".join(hdr) + "\n"
    txt += "; @launch kernel=attn_kernel grid=(256,1,1) block=(512,1,1) lds=163840\n"
    K2B = "--k2b" in sys.argv
    if K2B:
        txt += "; @launch kernel=oproj_kernel grid=(256,1,1) block=(512,1,1) lds=32768\n"
    else:
        txt += "; @launch kernel=oproj_kernel grid=(256,1,1) block=(256,1,1) lds=16384\n"
    txt += '.amdgcn_target "amdgcn-amd-amdhsa--gfx950"\n.text\n'
    a1 = Asm(); gen_k1(a1)
    a2 = Asm(); (gen_k2b if K2B else gen_k2)(a2)
    txt += a1.text() + a2.text()
    txt += '.section .rodata,"a"\n.p2align 6\n' + desc("attn_kernel", 256, 144)
    txt += ".p2align 6\n" + (desc("oproj_kernel", 64 + 192, 64) if K2B else desc("oproj_kernel", 64 + 256, 64))
    open(OUT, "w").write(txt)
    print("k1 lines", len(a1.lines), "nops", a1.nops, " k2 lines", len(a2.lines), "nops", a2.nops)


main()
```
